```python
import torch

def _softmax(x, axis=-1):
    return torch.softmax(x, dim=axis)
def _gelu(x):
    return torch.nn.functional.gelu(x, approximate="tanh")
def _silu(x):
    return torch.nn.functional.silu(x)
def _sigmoid(x):
    return torch.sigmoid(x)
def _layernorm(x, axis=-1, eps=1e-5):
    m = x.mean(dim=axis, keepdim=True)
    v = x.var(dim=axis, keepdim=True, unbiased=False)
    return (x - m) / torch.sqrt(v + eps)
def _scatter_add(tgt, idx, src, axis=0):
    return tgt.clone().index_add_(axis, idx, src)
def _segment_sum(src, seg, n):
    out = torch.zeros((n,) + src.shape[1:], dtype=src.dtype)
    return out.index_add_(0, seg, src)
def _pad(x, pw):
    flat = tuple(v for pair in reversed(pw) for v in pair)
    return torch.nn.functional.pad(x, flat)

kernel_name = 'standalone__mha_softmax__near_ridge'

def setup_inputs():

    _w = (lambda a: (lambda t: t.to(torch.bfloat16) if t.is_floating_point() else t)(torch.as_tensor(a)))
    B, H, Sq, Sk, D = 16, 16, 736, 512, 256
    return {
        "q": _w((lambda *s: torch.randn(*s, dtype=torch.bfloat16) * 0.8)(B, H, Sq, D)),
        "k": _w((lambda *s: torch.randn(*s, dtype=torch.bfloat16) * 0.8)(B, H, Sk, D)),
        "v": _w((lambda *s: torch.randn(*s, dtype=torch.bfloat16) * 0.05)(B, H, Sk, D)),
    }

def reference(q, k, v):
    scale = q.shape[-1] ** -0.5
    scores = torch.einsum("bhqd,bhkd->bhqk", q, k) * scale
    p = _softmax(scores, axis=-1)
    return torch.einsum("bhqk,bhkd->bhqd", p, v)
```

```python
import re

VCC, SCC, M0 = 2000, 2001, 2002


def V(n, cnt=1):
    return list(range(n, n + cnt))


def A(n, cnt=1):
    return list(range(256 + n, 256 + n + cnt))


def S(n, cnt=1):
    return list(range(1000 + n, 1000 + n + cnt))


def rname(kind, n, cnt):
    return f"{kind}{n}" if cnt == 1 else f"{kind}[{n}:{n+cnt-1}]"


def reg(r, cnt=1):
    return rname('v', r, cnt) if r < 256 else rname('a', r - 256, cnt)


class I:
    __slots__ = ('text', 'kind', 'reads', 'writes', 'cost', 'early', 'late', 'tag', 'waits', 'srcc',
                 'nop', 'wl', 'wv', 'uid', 'dl', 'preds', 'succs', 't', 'cond', 'prio', 'after')

    def __init__(self, text, kind, reads=(), writes=(), early=None, late=None, tag=None, waits=(), srcc=(), cond=None):
        self.text = text
        self.kind = kind
        self.reads = set(reads)
        self.writes = set(writes)
        self.cost = {'mfma': 8, 'trans': 8, 'valu': 4, 'dsr': 4, 'dsw': 4, 'vld': 4, 'vst': 4, 'dma': 8, 'salu': 4,
                     'bar': 4, 'br': 4, 'label': 0, 'raw': 4}[kind]
        self.early = early
        self.late = late
        self.tag = tag
        self.waits = tuple(waits)
        self.srcc = set(srcc)
        self.nop = 0
        self.wl = None
        self.wv = None
        self.cond = cond


LAT = {'dsr': 130, 'mfma': 56, 'trans': 12, 'valu': 4, 'vld': 800, 'salu': 4, 'dma': 4, 'dsw': 4, 'vst': 4, 'bar': 4,
       'br': 4, 'raw': 4, 'label': 0}


def schedule(ins, budget=22, maxn=5, verbose=False, name=''):
    n = len(ins)
    lastw = {}
    readers = {}
    for k, x in enumerate(ins):
        x.preds = {}
        x.succs = []
        x.uid = k
    prev_m = None
    for k, x in enumerate(ins):
        for r in x.reads:
            if r in lastw:
                p = lastw[r]
                lat = LAT[p.kind]
                if p.kind == 'mfma' and x.kind == 'mfma':
                    lat = 0 if r in x.srcc else 56
                if p.kind == 'valu' and x.kind == 'mfma':
                    lat = 12
                x.preds[p.uid] = max(x.preds.get(p.uid, 0), lat)
        for r in x.writes:
            if r in lastw:
                p = lastw[r]
                lat = 0
                if p.kind == 'mfma' and x.kind != 'mfma':
                    lat = 56
                x.preds[p.uid] = max(x.preds.get(p.uid, 0), lat)
            for p in readers.get(r, ()):
                if p is not x:
                    lat = 0
                    if p.kind == 'mfma' and r in p.srcc and x.kind != 'mfma':
                        lat = 32
                    x.preds[p.uid] = max(x.preds.get(p.uid, 0), lat)
        for r in x.reads:
            readers.setdefault(r, []).append(x)
        for r in x.writes:
            lastw[r] = x
            readers[r] = []
        if x.kind == 'mfma':
            if prev_m is not None:
                x.preds[prev_m.uid] = max(x.preds.get(prev_m.uid, 0), 0)
            prev_m = x
    for x in ins:
        for p in x.preds:
            ins[p].succs.append(x)
    mf = [x for x in ins if x.kind == 'mfma']
    nm = len(mf)
    g = 0
    for x in ins:
        if x.kind == 'mfma':
            x.dl = 32.0 * g
            g += 1
    END = 32.0 * nm
    for x in reversed(ins):
        if x.kind == 'mfma':
            continue
        d = END + 64 if x.late is None else 32.0 * x.late
        for s in x.succs:
            d = min(d, s.dl - s.preds[x.uid] - x.cost)
        x.dl = d
    done = set()
    out = []
    t = 0.0
    remaining = [x for x in ins if x.kind != 'mfma']
    gi = 0

    def emit(x):
        nonlocal t
        x.t = t
        out.append(x)
        done.add(x.uid)
        t += x.cost

    def force(x):
        for p in sorted(x.preds):
            if p not in done:
                px = ins[p]
                if px.kind == 'mfma':
                    raise RuntimeError(f"force needs mfma out of order: {x.text} <- {px.text}")
                force(px)
                remaining.remove(px)
        emit(x)

    def ready(x, slack=0):
        if x.early is not None and gi < x.early:
            return False
        for p, lat in x.preds.items():
            if p not in done:
                return False
            if ins[p].t + lat > t + slack:
                return False
        return True

    def fill(limit_cost, limit_n):
        used = 0
        cnt = 0
        ntrans = 0
        while remaining:
            cands = [x for x in remaining if ready(x)]
            if not cands:
                break
            cands.sort(key=lambda x: (x.dl, x.uid))
            pick = None
            for x in cands:
                if used + x.cost <= limit_cost + (2 if x.cost == 8 else 0) and cnt < limit_n:
                    pick = x
                    break
            if pick is None:
                break
            remaining.remove(pick)
            emit(pick)
            used += pick.cost if pick.kind != 'salu' else 2
            cnt += 1

    for m in mf:
        t = max(t, 32.0 * gi) if False else t
        for p in sorted(m.preds):
            if p not in done and ins[p].kind != 'mfma':
                px = ins[p]
                force(px)
                remaining.remove(px)
        start = max(t, getattr(schedule, 'pipe_free', 0))
        for p, lat in m.preds.items():
            start = max(start, ins[p].t + lat) if ins[p].kind != 'dsr' else start
        t = start
        emit(m)
        schedule.pipe_free = start + 32
        gi += 1
        fill(budget, maxn)
        t = max(t, schedule.pipe_free - 4)
    schedule.pipe_free = 0
    while remaining:
        cands = [x for x in remaining if all(p in done for p in x.preds)]
        cands.sort(key=lambda x: (0 if ready(x, 0) or x.early is not None else 1, x.dl, x.uid))
        x = cands[0]
        remaining.remove(x)
        emit(x)
    if verbose:
        print(f"; region {name}: {len(out)} instrs, {nm} mfma, est {t:.0f} cyc")
    return out


def is_valu(x):
    return x.kind in ('valu', 'trans')


def resolve(regions, trace):
    seq = []
    for name, ctx in trace:
        for x in regions[name]:
            if x.cond is None or x.cond(ctx):
                seq.append(x)
    INF = 10 ** 9

    def wait_pass(first):
        lg_issued = 0
        vm_issued = 0
        lg_done = 0
        vm_done = 0
        pend_l = {}
        pend_v = {}
        tag_last = {}
        for x in seq:
            needl = 0
            needv = 0
            for r in (x.reads | x.writes):
                if r in pend_l:
                    needl = max(needl, pend_l[r])
                if r in pend_v:
                    needv = max(needv, pend_v[r])
            for tg in x.waits:
                if tg == 'LGKM0':
                    needl = lg_issued
                elif tg == 'VM0':
                    needv = vm_issued
                elif tg in tag_last:
                    needv = max(needv, tag_last[tg])
            if first:
                if needl > 0:
                    x.wl = min(x.wl if x.wl is not None else INF, lg_issued - needl, 15)
                if needv > 0:
                    x.wv = min(x.wv if x.wv is not None else INF, vm_issued - needv, 63)
            else:
                if needl > lg_done:
                    x.prio = (x.prio[0] or True, x.prio[1])
                if needv > vm_done:
                    x.prio = (x.prio[0], True)
                if x.wl is not None:
                    lg_done = max(lg_done, lg_issued - x.wl)
                if x.wv is not None:
                    vm_done = max(vm_done, vm_issued - x.wv)
                assert needl <= lg_done and needv <= vm_done
            for r in (x.reads | x.writes):
                if r in pend_l and pend_l[r] <= needl:
                    del pend_l[r]
                if r in pend_v and pend_v[r] <= needv:
                    del pend_v[r]
            if x.kind in ('dsr', 'dsw'):
                lg_issued += 1
                if x.kind == 'dsr':
                    for r in x.writes:
                        pend_l[r] = lg_issued
            if x.kind in ('vld', 'vst', 'dma'):
                vm_issued += 1
                if x.kind == 'vld':
                    for r in x.writes:
                        pend_v[r] = vm_issued
                if x.tag:
                    tag_last[x.tag] = vm_issued

    for x in set(seq):
        x.wl = None
        x.wv = None
        x.prio = (False, False)
    wait_pass(True)
    wait_pass(False)
    for x in set(seq):
        if not x.prio[0]:
            x.wl = None
        if not x.prio[1]:
            x.wv = None

    def hazard_pass():
        changed = False
        pos = 0
        lv = {}
        lt = {}
        lm = {}
        lc = {}
        ls = {}
        lsg = {}
        lm0 = -100
        for x in seq:
            if x.kind == 'label':
                continue
            need = 0
            base = pos + (1 if (x.wl is not None or x.wv is not None) else 0)

            def req(p, d):
                nonlocal need
                if p is not None:
                    need = max(need, d - (base - p - 1))

            k = x.kind
            if k == 'mfma':
                for r in x.reads:
                    req(lv.get(r), 2)
                    if r in lm:
                        p, px = lm[r]
                        if r in x.srcc:
                            if px.writes != x.writes or x.srcc != px.writes:
                                req(p, 10)
                        else:
                            req(p, 12)
                for r in x.writes:
                    if r in lm and r not in x.srcc:
                        req(lm[r][0], 10)
            else:
                if k in ('valu', 'trans', 'dsr', 'dsw', 'vld', 'vst', 'dma'):
                    for r in (x.reads | x.writes):
                        if r in lm:
                            req(lm[r][0], 12)
                if k in ('valu', 'trans', 'dsr', 'vld'):
                    for r in x.writes:
                        req(lc.get(r), 7)
                        req(ls.get(r), 2)
                if is_valu(x):
                    for r in x.reads:
                        if k == 'valu':
                            req(lt.get(r), 1)
                        req(lsg.get(r), 2)
                    if 'permlane' in x.text:
                        for r in x.reads:
                            req(lv.get(r), 2)
                    if 'readfirstlane' in x.text:
                        for r in x.reads:
                            req(lv.get(r), 1)
                if k in ('vld', 'vst', 'dma'):
                    for r in x.reads:
                        req(lsg.get(r), 5)
                if k in ('dsr', 'dsw', 'vld', 'vst', 'dma'):
                    for r in x.reads:
                        req(lt.get(r), 1)
                if k == 'dma':
                    req(lm0, 1)
            if need > x.nop:
                x.nop = need
                changed = True
            pos = base + x.nop
            if k == 'mfma':
                for r in x.writes:
                    lm[r] = (pos, x)
                    lv.pop(r, None)
                for r in x.srcc:
                    lc[r] = pos
            elif is_valu(x):
                for r in x.writes:
                    if r < 512:
                        lv[r] = pos
                        lm.pop(r, None)
                        if k == 'trans':
                            lt[r] = pos
                        else:
                            lt.pop(r, None)
                    else:
                        lsg[r] = pos
            elif k in ('dsr', 'vld'):
                for r in x.writes:
                    lm.pop(r, None)
                    lv.pop(r, None)
            if k in ('vst', 'dsw'):
                for r in x.reads:
                    if r < 512:
                        ls[r] = pos
            if k == 'salu' and M0 in x.writes:
                lm0 = pos
            pos += 1
        return changed

    while hazard_pass():
        pass


def render(ins):
    out = []
    for x in ins:
        if x.kind == 'label':
            out.append(x.text)
            continue
        w = []
        if x.wv is not None:
            w.append(f"vmcnt({x.wv})")
        if x.wl is not None:
            w.append(f"lgkmcnt({x.wl})")
        if w:
            out.append("  s_waitcnt " + " ".join(w))
        n = x.nop
        while n > 0:
            k = min(n, 8)
            out.append(f"  s_nop {k-1}")
            n -= k
        out.append("  " + x.text)
    return out
```

```python
import sys, struct
from gen_core import *

OPT = dict(dsp=2, pfd=4, budget=22, maxn=5, betaA=10, betaB=10, nt_o=0, nt_q=0, qpf=0, stage=0)
for a in sys.argv[2:]:
    k, v = a.split('=')
    OPT[k] = int(v)

QBYTES = 96468992
KBYTES = 67108864
OOB = 0x80000000
CF = struct.unpack('<I', struct.pack('<f', 1.4426950408889634 / 16.0))[0]
THR = struct.unpack('<I', struct.pack('<f', 8.0 * 16.0 / 1.4426950408889634))[0]

vL16, vQD = 0, 1
vDMA = 2
vKA = 6
vVA = 14
vMC = [22, 23]
vTH = [24, 25]
vLS = [26, 27]
vF, vT0, vT1, vT2 = 28, 29, 30, 31
FR = 32
NFR = 6
XP = [56, 64, 72]
XS = [80, 96, 112]
OR = [128, 256 + 128]
QR = [256, 256 + 64]
sQ, sK, sV, sO = 4, 8, 12, 16
sW, sW4K, sC, sTHR = 20, 21, 22, 23
sIT, sBLK, sFLAG = 24, 25, 26
sKa = [28, 29, 30]
sKn = [31, 32, 33]
sVa = [34, 35, 36]
sQn = [39, 40]
sOo = [41, 42]
sX, sSS = 43, 44
sT = [46, 47, 48, 49, 50, 51]
sOt = 52
LK, LV, LP = 0, 49152, 98304

rare = []
frame = [0]


def mfma(d, a, b, c):
    ctext = reg(d, 16) if c else '0'
    rd = list(range(a, a + 4)) + list(range(b, b + 4)) + (list(range(d, d + 16)) if c else [])
    return I(f"v_mfma_f32_32x32x16_bf16 {reg(d,16)}, {reg(a,4)}, {reg(b,4)}, {ctext}", 'mfma', rd, range(d, d + 16),
             srcc=(range(d, d + 16) if c else ()))


def valu(text, rd, wr, kind='valu', **kw):
    return I(text, kind, rd, wr, **kw)


def salu(text, rd=(), wr=(), **kw):
    return I(text, 'salu', rd, wr, **kw)


nfr = [NFR]


def nextfrag():
    f = FR + 4 * (frame[0] % nfr[0])
    frame[0] += 1
    return f


def kfrag(slot, t):
    f = nextfrag()
    off = (t // 8) * 256 + slot * 16384 + LK
    return f, I(f"ds_read_b128 {reg(f,4)}, v{vKA + t % 8} offset:{off}", 'dsr', [vKA + t % 8, f'LK{slot}'],
                range(f, f + 4))


def vfrag(slot, T, kk):
    f = nextfrag()
    r = []
    for s in range(2):
        off = (T // 4) * 256 + kk * 8192 + slot * 16384
        ar = vVA + (T % 4) * 2 + s
        r.append(I(f"ds_read_b64_tr_b16 {reg(f + 2 * s, 2)}, v{ar} offset:{off}", 'dsr', [ar, f'LV{slot}'],
                   range(f + 2 * s, f + 2 * s + 2)))
    return f, r


def dma_group(srd, ssoff, ldsbase, lname, tag, early=None):
    e = lambda i: None if early is None else early + OPT['dsp'] * i
    l = lambda i: None if early is None else early + OPT['dsp'] * i + 1
    r = [salu(f"s_add_u32 m0, s{sW4K}, {ldsbase}", S(sW4K), [M0, SCC], early=early, late=l(0))]
    for i in range(4):
        r.append(I(f"buffer_load_dwordx4 v{vDMA+i}, s[{srd}:{srd+3}], s{ssoff} offen offset:{i*1024} lds", 'dma',
                   [vDMA + i, M0, lname] + S(ssoff), [lname + 'w', 'DMAORD'], tag=tag, early=e(i), late=l(i)))
    return r


def barrier(free, publish, waits, early=None, late=None):
    names = list(free) + list(publish)
    return I("s_barrier", 'bar', names, names + ['BAR'], waits=waits, early=early, late=late)


def maxchain(sb, dst, tmp):
    r = []
    r.append(valu(f"v_max3_f32 v{dst}, v{sb}, v{sb+1}, v{sb+2}", V(sb, 3), [dst]))
    r.append(valu(f"v_max3_f32 v{tmp}, v{sb+3}, v{sb+4}, v{sb+5}", V(sb + 3, 3), [tmp]))
    r.append(valu(f"v_max3_f32 v{dst}, v{dst}, v{sb+6}, v{sb+7}", [dst] + V(sb + 6, 2), [dst]))
    r.append(valu(f"v_max3_f32 v{tmp}, v{tmp}, v{sb+8}, v{sb+9}", [tmp] + V(sb + 8, 2), [tmp]))
    r.append(valu(f"v_max3_f32 v{dst}, v{dst}, v{sb+10}, v{sb+11}", [dst] + V(sb + 10, 2), [dst]))
    r.append(valu(f"v_max3_f32 v{tmp}, v{tmp}, v{sb+12}, v{sb+13}", [tmp] + V(sb + 12, 2), [tmp]))
    r.append(valu(f"v_max3_f32 v{dst}, v{dst}, v{sb+14}, v{sb+15}", [dst] + V(sb + 14, 2), [dst]))
    r.append(valu(f"v_max_f32 v{dst}, v{dst}, v{tmp}", [dst, tmp], [dst]))
    r.append(valu(f"v_mov_b32 v{tmp}, v{dst}", [dst], [tmp]))
    r.append(valu(f"v_permlane32_swap_b32 v{dst}, v{tmp}", [dst, tmp], [dst, tmp]))
    r.append(valu(f"v_max_f32 v{dst}, v{dst}, v{tmp}", [dst, tmp], [dst]))
    return r


site = [0]


def rescale_O(R, freg, tmp):
    L = []
    if R == 0:
        for i in range(128):
            L.append(f"  v_mul_f32 v{128+i}, v{128+i}, v{freg}")
    else:
        for i in range(0, 128, 2):
            L.append(f"  v_accvgpr_read_b32 v{tmp}, a{128+i}")
            L.append(f"  v_accvgpr_read_b32 v{tmp+1}, a{129+i}")
            L.append(f"  v_mul_f32 v{tmp}, v{tmp}, v{freg}")
            L.append(f"  v_mul_f32 v{tmp+1}, v{tmp+1}, v{freg}")
            L.append(f"  v_accvgpr_write_b32 a{128+i}, v{tmp}")
            L.append(f"  v_accvgpr_write_b32 a{129+i}, v{tmp+1}")
    return L


def softmax(R, sb, pb, check=True):
    tm, tmp = (vT0, vT1) if R == 1 else (vT2, vT1)
    r = []
    mc, th, ls = vMC[R], vTH[R], vLS[R]
    if check:
        r += maxchain(sb, tm, tmp)
        r.append(valu(f"v_cmp_gt_f32 vcc, v{tm}, v{th}", [tm, th], [VCC]))
        k = site[0]
        site[0] += 1
        st = [mc, th, ls, tm, tmp, VCC, SCC]
        if R == 1:
            st_w = st + list(range(OR[1], OR[1] + 128)) + [pb, pb + 1]
        else:
            st_w = st + [vF] + S(sFLAG)
        r.append(I(f"s_cbranch_vccnz RARE{k}\nRET{k}:", 'br', st_w, st_w))
        L = [f"RARE{k}:", "  s_nop 7", "  s_nop 7",
             f"  v_mul_f32 v{tmp}, s{sC}, v{tm}",
             f"  v_max_f32 v{tmp}, v{tmp}, v{mc}",
             f"  v_add_f32 v{tm}, s{sTHR}, v{tm}",
             f"  v_max_f32 v{th}, v{th}, v{tm}",
             f"  v_sub_f32 v{tm}, v{mc}, v{tmp}",
             f"  v_exp_f32 v{tm}, v{tm}",
             f"  v_mov_b32 v{mc}, v{tmp}",
             "  s_nop 1",
             f"  v_mul_f32 v{ls}, v{ls}, v{tm}"]
        if R == 1:
            L += rescale_O(1, tm, pb)
        else:
            L += [f"  v_mov_b32 v{vF}, v{tm}", f"  s_mov_b32 s{sFLAG}, 1"]
        L += ["  s_nop 3", f"  s_branch RET{k}"]
        rare.extend(L)
    for i in range(16):
        r.append(valu(f"v_fma_f32 v{sb+i}, v{sb+i}, s{sC}, -v{mc}", [sb + i, mc] + S(sC), [sb + i]))
        r.append(valu(f"v_exp_f32 v{sb+i}, v{sb+i}", [sb + i], [sb + i], kind='trans'))
        r.append(valu(f"v_add_f32 v{ls}, v{ls}, v{sb+i}", [ls, sb + i], [ls]))
        if i % 2:
            r.append(valu(f"v_cvt_pk_bf16_f32 v{pb+i//2}, v{sb+i-1}, v{sb+i}", [sb + i - 1, sb + i], [pb + i // 2]))
    return r


def applyF():
    k = site[0]
    site[0] += 1
    st = list(range(OR[0], OR[0] + 128)) + [vF, SCC] + S(sFLAG)
    r = [salu(f"s_cmp_lg_u32 s{sFLAG}, 0", S(sFLAG), [SCC]),
         I(f"s_cbranch_scc1 RARE{k}\nRET{k}:", 'br', st, st)]
    L = [f"RARE{k}:", "  s_nop 7", "  s_nop 7"] + rescale_O(0, vF, None) + [f"  s_mov_b32 s{sFLAG}, 0", "  s_nop 3",
                                                                           f"  s_branch RET{k}"]
    rare.extend(L)
    return r


def qk(slot, s0, s1, skip=0):
    r = []
    for t in range(16):
        f, rd = kfrag(slot, t)
        if t >= skip:
            r.append(rd)
        r.append(mfma(s0, f, QR[0] + 4 * t, t > 0))
        r.append(mfma(s1, f, QR[1] + 4 * t, t > 0))
    return r


def pre_a0():
    sv = frame[0]
    frame[0] = 0
    r = [kfrag(1, t)[1] for t in range(OPT['pfd'])]
    frame[0] = sv
    return r


def pv(slot, p0, p1, Rs=(0, 1)):
    r = []
    for T in range(8):
        for kk in range(2):
            f, rd = vfrag(slot, T, kk)
            r += rd
            for R in Rs:
                r.append(mfma(OR[R] + 16 * T, f, (p0, p1)[R] + 4 * kk, True))
    return r


def phaseA(rho, g0):
    r = applyF()
    body = qk((rho + 1) % 3, XS[(rho + 2) % 3], XS[(rho + 1) % 3], skip=(OPT['pfd'] if rho == 0 else 0))
    sm = softmax(1, XS[rho], XP[(rho + 2) % 3])
    sl = (rho + 2) % 3
    bar = [barrier([f'LV{sl}'], [f'LV{rho}'], [f'V{rho}'], early=g0 + OPT['betaA'])]
    bar += dma_group(sV, sVa[rho], LV + sl * 16384, f'LV{sl}', f'V{sl}', early=g0 + OPT['betaA'])
    return r + sm + bar + body


def phaseB(rho, g0):
    body = pv(rho, XP[rho], XP[(rho + 2) % 3])
    sm = softmax(0, XS[(rho + 2) % 3], XP[(rho + 1) % 3])
    sl = (rho + 1) % 3
    g = (rho + 2) % 3
    bar = [barrier([f'LK{sl}'], [f'LK{g}'], [f'K{g}'], early=g0 + OPT['betaB'])]
    bar += dma_group(sK, sKa[rho], LK + sl * 16384, f'LK{sl}', f'K{sl}', early=g0 + OPT['betaB'])
    return sm + bar + body


def qload(R, early=None):
    r = []
    nt = ' nt' if OPT['nt_q'] else ''
    for t in range(16):
        d = QR[R] + 4 * t
        off = (t // 4) * 128 + (t % 4) * 16
        r.append(I(f"buffer_load_dwordx4 {reg(d,4)}, v{vQD}, s[{sQ}:{sQ+3}], s{sQn[R]} offen offset:{off}{nt}", 'vld',
                   [vQD] + S(sQn[R]), list(range(d, d + 4)) + ['DMAORD'], early=early))
    return r


def tail():
    r = applyF()
    r.append(barrier([], ['LV0'], ['V0']))
    r += qload(0) + qload(1, early=6)
    sm = softmax(1, XS[0], XP[2])
    r += sm
    r += pv(0, XP[0], XP[2], Rs=(0,))
    r += pv(0, XP[0], XP[2], Rs=(1,))
    for R, dst, tmp in ((0, vF, vT2), (1, vT1, vT0)):
        r.append(valu(f"v_mov_b32 v{tmp}, v{vLS[R]}", [vLS[R]], [tmp]))
        r.append(valu(f"v_permlane32_swap_b32 v{vLS[R]}, v{tmp}", [vLS[R], tmp], [vLS[R], tmp]))
        r.append(valu(f"v_add_f32 v{tmp}, v{tmp}, v{vLS[R]}", [vLS[R], tmp], [tmp]))
        r.append(valu(f"v_rcp_f32 v{dst}, v{tmp}", [tmp], [dst], kind='trans'))
    return r


def blockcalc(rreg):
    t0, t1, t2, t3, t4, t5 = sT
    r = []
    a = lambda txt, rd, wr: r.append(salu(txt, rd, wr))
    a(f"s_lshl_b32 s{t0}, s{rreg}, 5", S(rreg), S(t0) + [SCC])
    a(f"s_add_u32 s{t0}, s{t0}, s{sSS}", S(t0) + S(sSS), S(t0) + [SCC])
    a(f"s_mul_i32 s{t1}, s{t0}, 171", S(t0), S(t1))
    a(f"s_lshr_b32 s{t1}, s{t1}, 9", S(t1), S(t1) + [SCC])
    a(f"s_mul_i32 s{t2}, s{t1}, 3", S(t1), S(t2))
    a(f"s_sub_u32 s{t2}, s{t0}, s{t2}", S(t0) + S(t2), S(t2) + [SCC])
    a(f"s_lshl_b32 s{t1}, s{t1}, 3", S(t1), S(t1) + [SCC])
    a(f"s_add_u32 s{t1}, s{t1}, s{sX}", S(t1) + S(sX), S(t1) + [SCC])
    a(f"s_lshl_b32 s{t3}, s{t1}, 18", S(t1), S(t3) + [SCC])
    a(f"s_add_u32 s{sKn[2]}, s{t3}, s{sW4K}", S(t3) + S(sW4K), S(sKn[2]) + [SCC])
    a(f"s_mul_i32 s{t3}, s{t1}, 376832", S(t1), S(t3))
    a(f"s_lshl_b32 s{t4}, s{t2}, 17", S(t2), S(t4) + [SCC])
    a(f"s_add_u32 s{t3}, s{t3}, s{t4}", S(t3) + S(t4), S(t3) + [SCC])
    a(f"s_lshl_b32 s{t4}, s{sW}, 15", S(sW), S(t4) + [SCC])
    a(f"s_add_u32 s{sQn[0]}, s{t3}, s{t4}", S(t3) + S(t4), S(sQn[0]) + [SCC])
    a(f"s_add_u32 s{sQn[1]}, s{sQn[0]}, 16384", S(sQn[0]), S(sQn[1]) + [SCC])
    a(f"s_lshl_b32 s{t4}, s{t2}, 2", S(t2), S(t4) + [SCC])
    a(f"s_add_u32 s{t4}, s{t4}, s{sW}", S(t4) + S(sW), S(t4) + [SCC])
    a(f"s_cmp_eq_u32 s{t4}, 11", S(t4), [SCC])
    a(f"s_cselect_b32 s{sQn[1]}, s{sOOB}, s{sQn[1]}", S(sQn[1]) + S(sOOB) + [SCC], S(sQn[1]))
    a(f"s_cmp_ge_u32 s{rreg}, 3", S(rreg), [SCC])
    a(f"s_cselect_b32 s{sQn[0]}, s{sOOB}, s{sQn[0]}", S(sQn[0]) + S(sOOB) + [SCC], S(sQn[0]))
    a(f"s_cselect_b32 s{sQn[1]}, s{sOOB}, s{sQn[1]}", S(sQn[1]) + S(sOOB) + [SCC], S(sQn[1]))
    a(f"s_cselect_b32 s{sKn[2]}, s{sOOB}, s{sKn[2]}", S(sKn[2]) + S(sOOB) + [SCC], S(sKn[2]))
    a(f"s_add_u32 s{sKn[0]}, s{sKn[2]}, 16384", S(sKn[2]), S(sKn[0]) + [SCC])
    a(f"s_add_u32 s{sKn[1]}, s{sKn[2]}, 32768", S(sKn[2]), S(sKn[1]) + [SCC])
    return r


sOOB = 27


def regionM():
    r = []
    inv = [vF, vT1]
    TA = XS[2]
    TC = XP[1]
    WA = XP[2]
    r.append(barrier(['LV0'], [], []))
    r += dma_group(sV, sKn[2], LV, 'LV0', 'V0')
    wa, ra, ga, tt = WA, WA + 4, WA + 5, WA + 6
    a = lambda txt, rd, wr: r.append(valu(txt, rd, wr))
    a(f"v_lshrrev_b32 v{tt}, 4, v{vL16}", [vL16], [tt])
    a(f"v_and_b32 v{ra}, 31, v{tt}", [tt], [ra])
    a(f"v_lshrrev_b32 v{ga}, 5, v{tt}", [tt], [ga])
    a(f"v_lshlrev_b32 v{ga}, 1, v{ga}", [ga], [ga])
    a(f"v_and_b32 v{wa}, 7, v{ra}", [ra], [wa])
    a(f"v_xor_b32 v{wa}, v{wa}, v{ga}", [wa, ga], [wa])
    a(f"v_lshlrev_b32 v{wa}, 4, v{wa}", [wa], [wa])
    a(f"v_lshl_or_b32 v{wa}, v{ra}, 9, v{wa}", [wa, ra], [wa])
    a(f"v_add_u32 v{wa}, s{sLPW}, v{wa}", [wa] + S(sLPW), [wa])
    a(f"v_xor_b32 v{wa+1}, 16, v{wa}", [wa], [wa + 1])
    a(f"v_xor_b32 v{wa+2}, 64, v{wa}", [wa], [wa + 2])
    a(f"v_xor_b32 v{wa+3}, 0x50, v{wa}", [wa], [wa + 3])
    a(f"v_lshrrev_b32 v{ra}, 3, v{tt}", [tt], [ra])
    a(f"v_and_b32 v{ga}, 7, v{tt}", [tt], [ga])
    a(f"v_xor_b32 v{tt}, v{ra}, v{ga}", [ra, ga], [tt])
    a(f"v_lshlrev_b32 v{ga}, 4, v{ga}", [ga], [ga])
    a(f"v_lshl_or_b32 v{ga}, v{ra}, 9, v{ga}", [ga, ra], [ga])
    a(f"v_lshlrev_b32 v{tt}, 4, v{tt}", [tt], [tt])
    a(f"v_lshl_or_b32 v{ra}, v{ra}, 9, v{tt}", [ra, tt], [ra])
    a(f"v_add_u32 v{ra}, s{sLPW}, v{ra}", [ra] + S(sLPW), [ra])
    TZ = XP[0]
    for i in range(4):
        a(f"v_mov_b32 v{TZ+i}, 0", [], [TZ + i])
    RBUF = [FR + 16, FR + 20, XP[0] + 4]
    nt = ' nt' if OPT['nt_o'] else ''
    rb = 0
    nfr[0] = 4
    frame[0] = 0
    qkl = qk(0, XS[1], XS[0])
    nfr[0] = NFR
    for R in range(2):
        if R == 1:
            r.append(barrier([], ['LK0', 'LK1'], ['K0', 'K1']))
        for T in range(8):
            o = OR[R] + 16 * T
            if R == 1:
                r += qkl[6 * T:6 * T + 6]
                for i in range(16):
                    a(f"v_accvgpr_read_b32 v{TA+i}, {reg(o+i)}", [o + i], [TA + i])
                src = TA
            else:
                src = o
            for i in range(0, 16, 2):
                a(f"v_pk_mul_f32 v[{src+i}:{src+i+1}], v[{src+i}:{src+i+1}], v[{inv[R]}:{inv[R]+1}] op_sel_hi:[1,0]",
                  [src + i, src + i + 1, inv[R]], [src + i, src + i + 1])
            for i in range(8):
                a(f"v_cvt_pk_bf16_f32 v{TC+i}, v{src+2*i}, v{src+2*i+1}", [src + 2 * i, src + 2 * i + 1], [TC + i])
            for u in range(2):
                ar = wa + (T % 2) * 2 + u
                off = (T // 2) * 128
                r.append(I(f"ds_write_b128 v{ar}, v[{TC+4*u}:{TC+4*u+3}] offset:{off}", 'dsw',
                           [ar] + V(TC + 4 * u, 4), ['LPW']))
            r.append(mfma(o, TZ, TZ, False))
        for aa in range(4):
            r.append(salu(f"s_add_u32 s{sOt+aa}, s{sOo[R]}, {aa*4096}", S(sOo[R]), S(sOt + aa) + [SCC]))
            for b in range(4):
                t = RBUF[rb % 3]
                rb += 1
                r.append(I(f"ds_read_b128 v[{t}:{t+3}], v{ra} offset:{aa*4096+b*128}", 'dsr', [ra, 'LPW'], V(t, 4)))
                r.append(I(f"buffer_store_dwordx4 v[{t}:{t+3}], v{ga}, s[{sO}:{sO+3}], s{sOt+aa} offen offset:{b*128}{nt}",
                           'vst', [ga] + V(t, 4) + S(sOt + aa), ['DMAORD']))
    for R, sb in ((0, XS[1]), (1, XS[0])):
        tm, tmp = vT0, vT2
        r += maxchain(sb, tm, tmp)
        a(f"v_mul_f32 v{vMC[R]}, s{sC}, v{tm}", [tm] + S(sC), [vMC[R]])
        a(f"v_add_f32 v{vTH[R]}, s{sTHR}, v{tm}", [tm] + S(sTHR), [vTH[R]])
        a(f"v_mov_b32 v{vLS[R]}, 0", [], [vLS[R]])
    r += softmax(0, XS[1], XP[0], check=False)
    r.append(salu(f"s_add_u32 s{sT[5]}, s{sKn[2]}, 49152", S(sKn[2]), S(sT[5]) + [SCC]))
    r.append(barrier(['LK0'], [], []))
    r += dma_group(sK, sT[5], LK, 'LK0', 'K0')
    b = lambda txt, rd, wr: r.append(salu(txt, rd, wr))
    for i in range(2):
        b(f"s_mov_b32 s{sOo[i]}, s{sQn[i]}", S(sQn[i]), S(sOo[i]))
    for i in range(3):
        b(f"s_add_u32 s{sKa[i]}, s{sKn[2]}, {(4+i)*16384}", S(sKn[2]), S(sKa[i]) + [SCC])
        b(f"s_add_u32 s{sVa[i]}, s{sKn[2]}, {(2+i)*16384}", S(sKn[2]), S(sVa[i]) + [SCC])
    b(f"s_add_u32 s{sBLK}, s{sBLK}, 1", S(sBLK), S(sBLK) + [SCC])
    b(f"s_mov_b32 s{sIT}, 0", [], S(sIT))
    b(f"s_mov_b32 s{sFLAG}, 0", [], S(sFLAG))
    r += blockcalc(sBLK)
    r += pre_a0()
    return r


sLPW = 45


def loop_end():
    r = []
    b = lambda txt, rd, wr: r.append(salu(txt, rd, wr))
    for i in range(3):
        b(f"s_add_u32 s{sKa[i]}, s{sKa[i]}, 49152", S(sKa[i]), S(sKa[i]) + [SCC])
        b(f"s_add_u32 s{sVa[i]}, s{sVa[i]}, 49152", S(sVa[i]), S(sVa[i]) + [SCC])
    b(f"s_add_u32 s{sIT}, s{sIT}, 1", S(sIT), S(sIT) + [SCC])
    b(f"s_cmp_eq_u32 s{sIT}, 4", S(sIT), [SCC])
    for i in range(3):
        b(f"s_cselect_b32 s{sKa[i]}, s{sKn[i]}, s{sKa[i]}", S(sKa[i]) + S(sKn[i]) + [SCC], S(sKa[i]))
    b(f"s_cselect_b32 s{sVa[2]}, s{sKn[0]}, s{sVa[2]}", S(sVa[2]) + S(sKn[0]) + [SCC], S(sVa[2]))
    return r


def prologue():
    L = []
    e = L.append
    e("  s_cmp_ge_u32 s2, 256")
    e("  s_cbranch_scc1 END")
    e(f"  s_load_dwordx2 s[{sQ}:{sQ+1}], s[0:1], 0")
    e(f"  s_load_dwordx2 s[{sK}:{sK+1}], s[0:1], 8")
    e(f"  s_load_dwordx2 s[{sV}:{sV+1}], s[0:1], 16")
    e(f"  s_load_dwordx2 s[{sO}:{sO+1}], s[0:1], 24")
    e(f"  s_and_b32 s{sX}, s2, 7")
    e(f"  s_lshr_b32 s{sSS}, s2, 3")
    e("  v_lshrrev_b32 v1, 6, v0")
    e("  v_and_b32 v0, 63, v0")
    e("  s_nop 0")
    e(f"  v_readfirstlane_b32 s{sW}, v1")
    e(f"  s_mov_b32 s{sQ+2}, {QBYTES}")
    e(f"  s_mov_b32 s{sQ+3}, 0x20000")
    e(f"  s_mov_b32 s{sK+2}, {KBYTES}")
    e(f"  s_mov_b32 s{sK+3}, 0x20000")
    e(f"  s_mov_b32 s{sV+2}, {KBYTES}")
    e(f"  s_mov_b32 s{sV+3}, 0x20000")
    e(f"  s_mov_b32 s{sO+2}, {QBYTES}")
    e(f"  s_mov_b32 s{sO+3}, 0x20000")
    e(f"  s_mov_b32 s{sC}, 0x{CF:08x}")
    e(f"  s_mov_b32 s{sTHR}, 0x{THR:08x}")
    e(f"  s_mov_b32 s{sOOB}, 0x{OOB:08x}")
    e(f"  s_lshl_b32 s{sW4K}, s{sW}, 12")
    e(f"  s_lshl_b32 s{sLPW}, s{sW}, 14")
    e(f"  s_add_u32 s{sLPW}, s{sLPW}, {LP}")
    e(f"  s_mov_b32 s{sBLK}, 0")
    e(f"  s_mov_b32 s{sFLAG}, 0")
    e(f"  s_mov_b32 s{sOo[0]}, s{sOOB}")
    e(f"  s_mov_b32 s{sOo[1]}, s{sOOB}")
    for x in blockcalc(sBLK):
        e("  " + x.text)
    e("  v_and_b32 v32, 31, v0")
    e("  v_lshrrev_b32 v33, 5, v0")
    e("  v_lshlrev_b32 v34, 6, v33")
    e(f"  v_lshl_or_b32 v{vQD}, v32, 9, v34")
    for i in range(4):
        e(f"  v_add_u32 v34, {2*(i%2)}, v33")
        e("  v_lshlrev_b32 v34, 2, v34")
        e(f"  s_lshl_b32 s{sT[0]}, s{sW}, 1")
        e(f"  s_add_u32 s{sT[0]}, s{sT[0]}, {i//2}")
        e(f"  s_and_b32 s{sT[0]}, s{sT[0]}, 3")
        e(f"  v_or_b32 v34, s{sT[0]}, v34")
        e("  v_xor_b32 v34, v34, v32")
        e("  v_lshlrev_b32 v34, 4, v34")
        e(f"  v_lshl_or_b32 v{vDMA+i}, v33, 9, v34")
    e("  v_and_b32 v34, 3, v32")
    e("  v_lshlrev_b32 v34, 2, v34")
    e("  v_bfe_u32 v35, v32, 2, 2")
    e("  v_or_b32 v34, v34, v35")
    e("  v_lshlrev_b32 v35, 2, v33")
    e("  v_xor_b32 v34, v34, v35")
    e("  v_lshlrev_b32 v34, 4, v34")
    e("  v_lshl_or_b32 v34, v32, 9, v34")
    for t in range(8):
        c = ((t // 4) * 8 + t % 4) * 16
        e(f"  v_xor_b32 v{vKA+t}, {c}, v34")
    e("  v_bfe_u32 v34, v0, 4, 1")
    e("  v_bfe_u32 v35, v0, 2, 2")
    e("  v_and_b32 v36, 3, v0")
    e("  v_and_b32 v37, 1, v36")
    e("  v_lshl_or_b32 v37, v37, 1, v34")
    e("  v_lshlrev_b32 v38, 2, v35")
    e("  v_or_b32 v38, v38, v33")
    e("  v_xor_b32 v37, v37, v38")
    e("  v_lshlrev_b32 v37, 4, v37")
    e("  v_lshrrev_b32 v36, 1, v36")
    e("  v_lshl_or_b32 v37, v36, 3, v37")
    e("  v_lshl_or_b32 v38, v33, 2, v35")
    e("  v_lshl_or_b32 v37, v38, 9, v37")
    e(f"  v_add_u32 v37, {LV}, v37")
    for Tm in range(4):
        for s in range(2):
            x = (4 * Tm * 16) ^ (2 * s * 16)
            e(f"  v_xor_b32 v{vVA+Tm*2+s}, {x}, v37")
            if s:
                e(f"  v_add_u32 v{vVA+Tm*2+s}, 4096, v{vVA+Tm*2+s}")
    e(f"  v_lshlrev_b32 v{vL16}, 4, v0")
    e("  s_waitcnt lgkmcnt(0)")
    return L


def main():
    pro = prologue()
    P = []
    P += dma_group(sK, sKn[2], LK, 'LK0', 'K0')
    P += qload(0) + qload(1)
    P += dma_group(sK, sKn[0], LK + 16384, 'LK1', 'K1')
    P += dma_group(sV, sKn[0], LV + 16384, 'LV1', 'V1')
    P += dma_group(sK, sKn[1], LK + 32768, 'LK2', 'K2')
    frame[0] = 0
    M = schedule(regionM(), budget=24, maxn=6, verbose=True, name='M')
    M.append(salu(f"s_cmp_eq_u32 s{sBLK}, 4", S(sBLK), [SCC]))
    M.append(I("s_cbranch_scc1 FIN", 'raw', [SCC]))
    body = []
    frame[0] = 0
    seq = []
    for rho in range(3):
        seq += phaseA(rho, rho * 64)
        seq += phaseB(rho, rho * 64 + 32)
    assert frame[0] % NFR == 0
    seq += pre_a0()
    seq += loop_end()
    body = schedule(seq, budget=OPT['budget'], maxn=OPT['maxn'], verbose=True, name='L')
    body.append(salu(f"s_cmp_lt_u32 s{sIT}, 5", S(sIT), [SCC]))
    body.append(I("s_cbranch_scc1 LOOP", 'raw', [SCC]))
    frame[0] = 0
    T = schedule(tail(), budget=OPT['budget'], maxn=OPT['maxn'], verbose=True, name='T')
    T.append(I("s_branch MREG", 'raw'))
    regions = dict(P=P, M=M, L=body, T=T)
    trace = [('P', 0), ('M', 0)]
    for b in range(3):
        trace += [('L', i) for i in range(5)] + [('T', 0), ('M', 0)]
    resolve(regions, trace)
    out = []
    hdr = open('standalone__mha_softmax__near_ridge.s.ref').read().split('\n')
    for ln in hdr:
        if ln.startswith('; @launch'):
            out.append('; @launch grid=(256,1,1) block=(256,1,1) lds=163840')
        elif ln.startswith('standalone__mha_softmax__near_ridge_kernel:'):
            out.append(ln)
            break
        else:
            out.append(ln)
    out += pro
    out += render(P)
    out.append("MREG:")
    out += render(M)
    out.append("LOOP:")
    out += render(body)
    out += render(T)
    out.append("FIN:")
    out.append("  s_waitcnt vmcnt(0)")
    out.append("END:")
    out.append("  s_endpgm")
    out += rare
    out += """.section .rodata,"a"
.p2align 6
.amdhsa_kernel standalone__mha_softmax__near_ridge_kernel
  .amdhsa_next_free_vgpr 512
  .amdhsa_next_free_sgpr 102
  .amdhsa_accum_offset 256
  .amdhsa_group_segment_fixed_size 0
  .amdhsa_kernarg_size 48
  .amdhsa_user_sgpr_count 2
  .amdhsa_user_sgpr_kernarg_segment_ptr 1
  .amdhsa_system_sgpr_workgroup_id_x 1
.end_amdhsa_kernel""".split('\n')
    open(sys.argv[1], 'w').write('\n'.join(out) + '\n')


main()
```

```python
import sys, struct
from gen_core import *

OPT = dict(stamp=-1, dsp=2, pfd=4, budget=22, maxn=5, betaA=10, betaB=10, nt_o=0, nt_q=0, qpf=0, stage=0)
for a in sys.argv[2:]:
    k, v = a.split('=')
    OPT[k] = int(v)

QBYTES = 96468992
KBYTES = 67108864
OOB = 0x80000000
CF = struct.unpack('<I', struct.pack('<f', 1.4426950408889634 / 16.0))[0]
THR = struct.unpack('<I', struct.pack('<f', 8.0 * 16.0 / 1.4426950408889634))[0]

vL16, vQD = 0, 1
vDMA = 2
vKA = 6
vVA = 14
vMC = [22, 23]
vTH = [24, 25]
vLS = [26, 27]
vF, vT0, vT1, vT2 = 28, 29, 30, 31
FR = 32
NFR = 6
XP = [56, 64, 72]
XS = [80, 96, 112]
OR = [128, 256 + 128]
QR = [256, 256 + 64]
sQ, sK, sV, sO = 4, 8, 12, 16
sW, sW4K, sC, sTHR = 20, 21, 22, 23
sIT, sBLK, sFLAG = 24, 25, 26
sKa = [28, 29, 30]
sKn = [31, 32, 33]
sVa = [34, 35, 36]
sQn = [39, 40]
sOo = [41, 42]
sX, sSS = 43, 44
sT = [46, 47, 48, 49, 50, 51]
sOt = 52
LK, LV, LP = 0, 49152, 98304

rare = []
frame = [0]


def mfma(d, a, b, c):
    ctext = reg(d, 16) if c else '0'
    rd = list(range(a, a + 4)) + list(range(b, b + 4)) + (list(range(d, d + 16)) if c else [])
    return I(f"v_mfma_f32_32x32x16_bf16 {reg(d,16)}, {reg(a,4)}, {reg(b,4)}, {ctext}", 'mfma', rd, range(d, d + 16),
             srcc=(range(d, d + 16) if c else ()))


def valu(text, rd, wr, kind='valu', **kw):
    return I(text, kind, rd, wr, **kw)


def salu(text, rd=(), wr=(), **kw):
    return I(text, 'salu', rd, wr, **kw)


nfr = [NFR]


def nextfrag():
    f = FR + 4 * (frame[0] % nfr[0])
    frame[0] += 1
    return f


def kfrag(slot, t):
    f = nextfrag()
    off = (t // 8) * 256 + slot * 16384 + LK
    return f, I(f"ds_read_b128 {reg(f,4)}, v{vKA + t % 8} offset:{off}", 'dsr', [vKA + t % 8, f'LK{slot}'],
                range(f, f + 4))


def vfrag(slot, T, kk):
    f = nextfrag()
    r = []
    for s in range(2):
        off = (T // 4) * 256 + kk * 8192 + slot * 16384
        ar = vVA + (T % 4) * 2 + s
        r.append(I(f"ds_read_b64_tr_b16 {reg(f + 2 * s, 2)}, v{ar} offset:{off}", 'dsr', [ar, f'LV{slot}'],
                   range(f + 2 * s, f + 2 * s + 2)))
    return f, r


def dma_group(srd, ssoff, ldsbase, lname, tag, early=None):
    e = lambda i: None if early is None else early + OPT['dsp'] * i
    l = lambda i: None if early is None else early + OPT['dsp'] * i + 1
    r = [salu(f"s_add_u32 m0, s{sW4K}, {ldsbase}", S(sW4K), [M0, SCC], early=early, late=l(0))]
    for i in range(4):
        r.append(I(f"buffer_load_dwordx4 v{vDMA+i}, s[{srd}:{srd+3}], s{ssoff} offen offset:{i*1024} lds", 'dma',
                   [vDMA + i, M0, lname] + S(ssoff), [lname + 'w', 'DMAORD'], tag=tag, early=e(i), late=l(i)))
    return r


def barrier(free, publish, waits, early=None, late=None):
    names = list(free) + list(publish)
    return I("s_barrier", 'bar', names, names + ['BAR'], waits=waits, early=early, late=late)


def maxchain(sb, dst, tmp):
    r = []
    r.append(valu(f"v_max3_f32 v{dst}, v{sb}, v{sb+1}, v{sb+2}", V(sb, 3), [dst]))
    r.append(valu(f"v_max3_f32 v{tmp}, v{sb+3}, v{sb+4}, v{sb+5}", V(sb + 3, 3), [tmp]))
    r.append(valu(f"v_max3_f32 v{dst}, v{dst}, v{sb+6}, v{sb+7}", [dst] + V(sb + 6, 2), [dst]))
    r.append(valu(f"v_max3_f32 v{tmp}, v{tmp}, v{sb+8}, v{sb+9}", [tmp] + V(sb + 8, 2), [tmp]))
    r.append(valu(f"v_max3_f32 v{dst}, v{dst}, v{sb+10}, v{sb+11}", [dst] + V(sb + 10, 2), [dst]))
    r.append(valu(f"v_max3_f32 v{tmp}, v{tmp}, v{sb+12}, v{sb+13}", [tmp] + V(sb + 12, 2), [tmp]))
    r.append(valu(f"v_max3_f32 v{dst}, v{dst}, v{sb+14}, v{sb+15}", [dst] + V(sb + 14, 2), [dst]))
    r.append(valu(f"v_max_f32 v{dst}, v{dst}, v{tmp}", [dst, tmp], [dst]))
    r.append(valu(f"v_mov_b32 v{tmp}, v{dst}", [dst], [tmp]))
    r.append(valu(f"v_permlane32_swap_b32 v{dst}, v{tmp}", [dst, tmp], [dst, tmp]))
    r.append(valu(f"v_max_f32 v{dst}, v{dst}, v{tmp}", [dst, tmp], [dst]))
    return r


site = [0]


def rescale_O(R, freg, tmp):
    L = []
    if R == 0:
        for i in range(128):
            L.append(f"  v_mul_f32 v{128+i}, v{128+i}, v{freg}")
    else:
        for i in range(0, 128, 2):
            L.append(f"  v_accvgpr_read_b32 v{tmp}, a{128+i}")
            L.append(f"  v_accvgpr_read_b32 v{tmp+1}, a{129+i}")
            L.append(f"  v_mul_f32 v{tmp}, v{tmp}, v{freg}")
            L.append(f"  v_mul_f32 v{tmp+1}, v{tmp+1}, v{freg}")
            L.append(f"  v_accvgpr_write_b32 a{128+i}, v{tmp}")
            L.append(f"  v_accvgpr_write_b32 a{129+i}, v{tmp+1}")
    return L


def softmax(R, sb, pb, check=True):
    tm, tmp = (vT0, vT1) if R == 1 else (vT2, vT1)
    r = []
    mc, th, ls = vMC[R], vTH[R], vLS[R]
    if check:
        r += maxchain(sb, tm, tmp)
        r.append(valu(f"v_cmp_gt_f32 vcc, v{tm}, v{th}", [tm, th], [VCC]))
        k = site[0]
        site[0] += 1
        st = [mc, th, ls, tm, tmp, VCC, SCC]
        if R == 1:
            st_w = st + list(range(OR[1], OR[1] + 128)) + [pb, pb + 1]
        else:
            st_w = st + [vF] + S(sFLAG)
        r.append(I(f"s_cbranch_vccnz RARE{k}\nRET{k}:", 'br', st_w, st_w))
        L = [f"RARE{k}:", "  s_nop 7", "  s_nop 7",
             f"  v_mul_f32 v{tmp}, s{sC}, v{tm}",
             f"  v_max_f32 v{tmp}, v{tmp}, v{mc}",
             f"  v_add_f32 v{tm}, s{sTHR}, v{tm}",
             f"  v_max_f32 v{th}, v{th}, v{tm}",
             f"  v_sub_f32 v{tm}, v{mc}, v{tmp}",
             f"  v_exp_f32 v{tm}, v{tm}",
             f"  v_mov_b32 v{mc}, v{tmp}",
             "  s_nop 1",
             f"  v_mul_f32 v{ls}, v{ls}, v{tm}"]
        if R == 1:
            L += rescale_O(1, tm, pb)
        else:
            L += [f"  v_mov_b32 v{vF}, v{tm}", f"  s_mov_b32 s{sFLAG}, 1"]
        L += ["  s_nop 3", f"  s_branch RET{k}"]
        rare.extend(L)
    for i in range(16):
        r.append(valu(f"v_fma_f32 v{sb+i}, v{sb+i}, s{sC}, -v{mc}", [sb + i, mc] + S(sC), [sb + i]))
        r.append(valu(f"v_exp_f32 v{sb+i}, v{sb+i}", [sb + i], [sb + i], kind='trans'))
        r.append(valu(f"v_add_f32 v{ls}, v{ls}, v{sb+i}", [ls, sb + i], [ls]))
        if i % 2:
            r.append(valu(f"v_cvt_pk_bf16_f32 v{pb+i//2}, v{sb+i-1}, v{sb+i}", [sb + i - 1, sb + i], [pb + i // 2]))
    return r


def applyF():
    k = site[0]
    site[0] += 1
    st = list(range(OR[0], OR[0] + 128)) + [vF, SCC] + S(sFLAG)
    r = [salu(f"s_cmp_lg_u32 s{sFLAG}, 0", S(sFLAG), [SCC]),
         I(f"s_cbranch_scc1 RARE{k}\nRET{k}:", 'br', st, st)]
    L = [f"RARE{k}:", "  s_nop 7", "  s_nop 7"] + rescale_O(0, vF, None) + [f"  s_mov_b32 s{sFLAG}, 0", "  s_nop 3",
                                                                           f"  s_branch RET{k}"]
    rare.extend(L)
    return r


def qk(slot, s0, s1, skip=0):
    r = []
    for t in range(16):
        f, rd = kfrag(slot, t)
        if t >= skip:
            r.append(rd)
        r.append(mfma(s0, f, QR[0] + 4 * t, t > 0))
        r.append(mfma(s1, f, QR[1] + 4 * t, t > 0))
    return r


def pre_a0():
    sv = frame[0]
    frame[0] = 0
    r = [kfrag(1, t)[1] for t in range(OPT['pfd'])]
    frame[0] = sv
    return r


def pv(slot, p0, p1, Rs=(0, 1)):
    r = []
    for T in range(8):
        for kk in range(2):
            f, rd = vfrag(slot, T, kk)
            r += rd
            for R in Rs:
                r.append(mfma(OR[R] + 16 * T, f, (p0, p1)[R] + 4 * kk, True))
    return r


def phaseA(rho, g0):
    r = applyF()
    body = qk((rho + 1) % 3, XS[(rho + 2) % 3], XS[(rho + 1) % 3], skip=(OPT['pfd'] if rho == 0 else 0))
    sm = softmax(1, XS[rho], XP[(rho + 2) % 3])
    sl = (rho + 2) % 3
    bar = [barrier([f'LV{sl}'], [f'LV{rho}'], [f'V{rho}'], early=g0 + OPT['betaA'])]
    bar += dma_group(sV, sVa[rho], LV + sl * 16384, f'LV{sl}', f'V{sl}', early=g0 + OPT['betaA'])
    return r + sm + bar + body


def phaseB(rho, g0):
    body = pv(rho, XP[rho], XP[(rho + 2) % 3])
    sm = softmax(0, XS[(rho + 2) % 3], XP[(rho + 1) % 3])
    sl = (rho + 1) % 3
    g = (rho + 2) % 3
    bar = [barrier([f'LK{sl}'], [f'LK{g}'], [f'K{g}'], early=g0 + OPT['betaB'])]
    bar += dma_group(sK, sKa[rho], LK + sl * 16384, f'LK{sl}', f'K{sl}', early=g0 + OPT['betaB'])
    return sm + bar + body


def qload(R, early=None):
    r = []
    nt = ' nt' if OPT['nt_q'] else ''
    for t in range(16):
        d = QR[R] + 4 * t
        off = (t // 4) * 128 + (t % 4) * 16
        r.append(I(f"buffer_load_dwordx4 {reg(d,4)}, v{vQD}, s[{sQ}:{sQ+3}], s{sQn[R]} offen offset:{off}{nt}", 'vld',
                   [vQD] + S(sQn[R]), list(range(d, d + 4)) + ['DMAORD'], early=early))
    return r


def tail():
    r = applyF()
    r.append(barrier([], ['LV0'], ['V0']))
    r += qload(0) + qload(1, early=6)
    sm = softmax(1, XS[0], XP[2])
    r += sm
    r += pv(0, XP[0], XP[2], Rs=(0,))
    r += pv(0, XP[0], XP[2], Rs=(1,))
    for R, dst, tmp in ((0, vF, vT2), (1, vT1, vT0)):
        r.append(valu(f"v_mov_b32 v{tmp}, v{vLS[R]}", [vLS[R]], [tmp]))
        r.append(valu(f"v_permlane32_swap_b32 v{vLS[R]}, v{tmp}", [vLS[R], tmp], [vLS[R], tmp]))
        r.append(valu(f"v_add_f32 v{tmp}, v{tmp}, v{vLS[R]}", [vLS[R], tmp], [tmp]))
        r.append(valu(f"v_rcp_f32 v{dst}, v{tmp}", [tmp], [dst], kind='trans'))
    return r


def blockcalc(rreg):
    t0, t1, t2, t3, t4, t5 = sT
    r = []
    a = lambda txt, rd, wr: r.append(salu(txt, rd, wr))
    a(f"s_lshl_b32 s{t0}, s{rreg}, 5", S(rreg), S(t0) + [SCC])
    a(f"s_add_u32 s{t0}, s{t0}, s{sSS}", S(t0) + S(sSS), S(t0) + [SCC])
    a(f"s_mul_i32 s{t1}, s{t0}, 171", S(t0), S(t1))
    a(f"s_lshr_b32 s{t1}, s{t1}, 9", S(t1), S(t1) + [SCC])
    a(f"s_mul_i32 s{t2}, s{t1}, 3", S(t1), S(t2))
    a(f"s_sub_u32 s{t2}, s{t0}, s{t2}", S(t0) + S(t2), S(t2) + [SCC])
    a(f"s_lshl_b32 s{t1}, s{t1}, 3", S(t1), S(t1) + [SCC])
    a(f"s_add_u32 s{t1}, s{t1}, s{sX}", S(t1) + S(sX), S(t1) + [SCC])
    a(f"s_lshl_b32 s{t3}, s{t1}, 18", S(t1), S(t3) + [SCC])
    a(f"s_add_u32 s{sKn[2]}, s{t3}, s{sW4K}", S(t3) + S(sW4K), S(sKn[2]) + [SCC])
    a(f"s_mul_i32 s{t3}, s{t1}, 376832", S(t1), S(t3))
    a(f"s_lshl_b32 s{t4}, s{t2}, 17", S(t2), S(t4) + [SCC])
    a(f"s_add_u32 s{t3}, s{t3}, s{t4}", S(t3) + S(t4), S(t3) + [SCC])
    a(f"s_lshl_b32 s{t4}, s{sW}, 15", S(sW), S(t4) + [SCC])
    a(f"s_add_u32 s{sQn[0]}, s{t3}, s{t4}", S(t3) + S(t4), S(sQn[0]) + [SCC])
    a(f"s_add_u32 s{sQn[1]}, s{sQn[0]}, 16384", S(sQn[0]), S(sQn[1]) + [SCC])
    a(f"s_lshl_b32 s{t4}, s{t2}, 2", S(t2), S(t4) + [SCC])
    a(f"s_add_u32 s{t4}, s{t4}, s{sW}", S(t4) + S(sW), S(t4) + [SCC])
    a(f"s_cmp_eq_u32 s{t4}, 11", S(t4), [SCC])
    a(f"s_cselect_b32 s{sQn[1]}, s{sOOB}, s{sQn[1]}", S(sQn[1]) + S(sOOB) + [SCC], S(sQn[1]))
    a(f"s_cmp_ge_u32 s{rreg}, 3", S(rreg), [SCC])
    a(f"s_cselect_b32 s{sQn[0]}, s{sOOB}, s{sQn[0]}", S(sQn[0]) + S(sOOB) + [SCC], S(sQn[0]))
    a(f"s_cselect_b32 s{sQn[1]}, s{sOOB}, s{sQn[1]}", S(sQn[1]) + S(sOOB) + [SCC], S(sQn[1]))
    a(f"s_cselect_b32 s{sKn[2]}, s{sOOB}, s{sKn[2]}", S(sKn[2]) + S(sOOB) + [SCC], S(sKn[2]))
    a(f"s_add_u32 s{sKn[0]}, s{sKn[2]}, 16384", S(sKn[2]), S(sKn[0]) + [SCC])
    a(f"s_add_u32 s{sKn[1]}, s{sKn[2]}, 32768", S(sKn[2]), S(sKn[1]) + [SCC])
    return r


sOOB = 27


def regionM():
    r = []
    inv = [vF, vT1]
    TA = XS[2]
    TC = XP[1]
    WA = XP[2]
    r.append(barrier(['LV0'], [], []))
    r += dma_group(sV, sKn[2], LV, 'LV0', 'V0')
    wa, ra, ga, tt = WA, WA + 4, WA + 5, WA + 6
    a = lambda txt, rd, wr: r.append(valu(txt, rd, wr))
    a(f"v_lshrrev_b32 v{tt}, 4, v{vL16}", [vL16], [tt])
    a(f"v_and_b32 v{ra}, 31, v{tt}", [tt], [ra])
    a(f"v_lshrrev_b32 v{ga}, 5, v{tt}", [tt], [ga])
    a(f"v_lshlrev_b32 v{ga}, 1, v{ga}", [ga], [ga])
    a(f"v_and_b32 v{wa}, 7, v{ra}", [ra], [wa])
    a(f"v_xor_b32 v{wa}, v{wa}, v{ga}", [wa, ga], [wa])
    a(f"v_lshlrev_b32 v{wa}, 4, v{wa}", [wa], [wa])
    a(f"v_lshl_or_b32 v{wa}, v{ra}, 9, v{wa}", [wa, ra], [wa])
    a(f"v_add_u32 v{wa}, s{sLPW}, v{wa}", [wa] + S(sLPW), [wa])
    a(f"v_xor_b32 v{wa+1}, 16, v{wa}", [wa], [wa + 1])
    a(f"v_xor_b32 v{wa+2}, 64, v{wa}", [wa], [wa + 2])
    a(f"v_xor_b32 v{wa+3}, 0x50, v{wa}", [wa], [wa + 3])
    a(f"v_lshrrev_b32 v{ra}, 3, v{tt}", [tt], [ra])
    a(f"v_and_b32 v{ga}, 7, v{tt}", [tt], [ga])
    a(f"v_xor_b32 v{tt}, v{ra}, v{ga}", [ra, ga], [tt])
    a(f"v_lshlrev_b32 v{ga}, 4, v{ga}", [ga], [ga])
    a(f"v_lshl_or_b32 v{ga}, v{ra}, 9, v{ga}", [ga, ra], [ga])
    a(f"v_lshlrev_b32 v{tt}, 4, v{tt}", [tt], [tt])
    a(f"v_lshl_or_b32 v{ra}, v{ra}, 9, v{tt}", [ra, tt], [ra])
    a(f"v_add_u32 v{ra}, s{sLPW}, v{ra}", [ra] + S(sLPW), [ra])
    TZ = XP[0]
    for i in range(4):
        a(f"v_mov_b32 v{TZ+i}, 0", [], [TZ + i])
    RBUF = [FR + 16, FR + 20, XP[0] + 4]
    nt = ' nt' if OPT['nt_o'] else ''
    rb = 0
    nfr[0] = 4
    frame[0] = 0
    qkl = qk(0, XS[1], XS[0])
    nfr[0] = NFR
    for R in range(2):
        if R == 1:
            r.append(barrier([], ['LK0', 'LK1'], ['K0', 'K1']))
        for T in range(8):
            o = OR[R] + 16 * T
            if R == 1:
                r += qkl[6 * T:6 * T + 6]
                for i in range(16):
                    a(f"v_accvgpr_read_b32 v{TA+i}, {reg(o+i)}", [o + i], [TA + i])
                src = TA
            else:
                src = o
            for i in range(0, 16, 2):
                a(f"v_pk_mul_f32 v[{src+i}:{src+i+1}], v[{src+i}:{src+i+1}], v[{inv[R]}:{inv[R]+1}] op_sel_hi:[1,0]",
                  [src + i, src + i + 1, inv[R]], [src + i, src + i + 1])
            for i in range(8):
                a(f"v_cvt_pk_bf16_f32 v{TC+i}, v{src+2*i}, v{src+2*i+1}", [src + 2 * i, src + 2 * i + 1], [TC + i])
            for u in range(2):
                ar = wa + (T % 2) * 2 + u
                off = (T // 2) * 128
                r.append(I(f"ds_write_b128 v{ar}, v[{TC+4*u}:{TC+4*u+3}] offset:{off}", 'dsw',
                           [ar] + V(TC + 4 * u, 4), ['LPW']))
            r.append(mfma(o, TZ, TZ, False))
        for aa in range(4):
            r.append(salu(f"s_add_u32 s{sOt+aa}, s{sOo[R]}, {aa*4096}", S(sOo[R]), S(sOt + aa) + [SCC]))
            for b in range(4):
                t = RBUF[rb % 3]
                rb += 1
                r.append(I(f"ds_read_b128 v[{t}:{t+3}], v{ra} offset:{aa*4096+b*128}", 'dsr', [ra, 'LPW'], V(t, 4)))
                r.append(I(f"buffer_store_dwordx4 v[{t}:{t+3}], v{ga}, s[{sO}:{sO+3}], s{sOt+aa} offen offset:{b*128}{nt}",
                           'vst', [ga] + V(t, 4) + S(sOt + aa), ['DMAORD']))
    for R, sb in ((0, XS[1]), (1, XS[0])):
        tm, tmp = vT0, vT2
        r += maxchain(sb, tm, tmp)
        a(f"v_mul_f32 v{vMC[R]}, s{sC}, v{tm}", [tm] + S(sC), [vMC[R]])
        a(f"v_add_f32 v{vTH[R]}, s{sTHR}, v{tm}", [tm] + S(sTHR), [vTH[R]])
        a(f"v_mov_b32 v{vLS[R]}, 0", [], [vLS[R]])
    r += softmax(0, XS[1], XP[0], check=False)
    r.append(salu(f"s_add_u32 s{sT[5]}, s{sKn[2]}, 49152", S(sKn[2]), S(sT[5]) + [SCC]))
    r.append(barrier(['LK0'], [], []))
    r += dma_group(sK, sT[5], LK, 'LK0', 'K0')
    b = lambda txt, rd, wr: r.append(salu(txt, rd, wr))
    for i in range(2):
        b(f"s_mov_b32 s{sOo[i]}, s{sQn[i]}", S(sQn[i]), S(sOo[i]))
    for i in range(3):
        b(f"s_add_u32 s{sKa[i]}, s{sKn[2]}, {(4+i)*16384}", S(sKn[2]), S(sKa[i]) + [SCC])
        b(f"s_add_u32 s{sVa[i]}, s{sKn[2]}, {(2+i)*16384}", S(sKn[2]), S(sVa[i]) + [SCC])
    b(f"s_add_u32 s{sBLK}, s{sBLK}, 1", S(sBLK), S(sBLK) + [SCC])
    b(f"s_mov_b32 s{sIT}, 0", [], S(sIT))
    b(f"s_mov_b32 s{sFLAG}, 0", [], S(sFLAG))
    r += blockcalc(sBLK)
    r += pre_a0()
    return r


sLPW = 45


def loop_end():
    r = []
    b = lambda txt, rd, wr: r.append(salu(txt, rd, wr))
    for i in range(3):
        b(f"s_add_u32 s{sKa[i]}, s{sKa[i]}, 49152", S(sKa[i]), S(sKa[i]) + [SCC])
        b(f"s_add_u32 s{sVa[i]}, s{sVa[i]}, 49152", S(sVa[i]), S(sVa[i]) + [SCC])
    b(f"s_add_u32 s{sIT}, s{sIT}, 1", S(sIT), S(sIT) + [SCC])
    b(f"s_cmp_eq_u32 s{sIT}, 4", S(sIT), [SCC])
    for i in range(3):
        b(f"s_cselect_b32 s{sKa[i]}, s{sKn[i]}, s{sKa[i]}", S(sKa[i]) + S(sKn[i]) + [SCC], S(sKa[i]))
    b(f"s_cselect_b32 s{sVa[2]}, s{sKn[0]}, s{sVa[2]}", S(sVa[2]) + S(sKn[0]) + [SCC], S(sVa[2]))
    return r


def prologue():
    L = []
    e = L.append
    e("  s_cmp_ge_u32 s2, 256")
    e("  s_cbranch_scc1 END")
    e(f"  s_load_dwordx2 s[{sQ}:{sQ+1}], s[0:1], 0")
    e(f"  s_load_dwordx2 s[{sK}:{sK+1}], s[0:1], 8")
    e(f"  s_load_dwordx2 s[{sV}:{sV+1}], s[0:1], 16")
    e(f"  s_load_dwordx2 s[{sO}:{sO+1}], s[0:1], 24")
    e(f"  s_and_b32 s{sX}, s2, 7")
    e(f"  s_lshr_b32 s{sSS}, s2, 3")
    e("  v_lshrrev_b32 v1, 6, v0")
    e("  v_and_b32 v0, 63, v0")
    e("  s_nop 0")
    e(f"  v_readfirstlane_b32 s{sW}, v1")
    e(f"  s_mov_b32 s{sQ+2}, {QBYTES}")
    e(f"  s_mov_b32 s{sQ+3}, 0x20000")
    e(f"  s_mov_b32 s{sK+2}, {KBYTES}")
    e(f"  s_mov_b32 s{sK+3}, 0x20000")
    e(f"  s_mov_b32 s{sV+2}, {KBYTES}")
    e(f"  s_mov_b32 s{sV+3}, 0x20000")
    e(f"  s_mov_b32 s{sO+2}, {QBYTES}")
    e(f"  s_mov_b32 s{sO+3}, 0x20000")
    e(f"  s_mov_b32 s{sC}, 0x{CF:08x}")
    e(f"  s_mov_b32 s{sTHR}, 0x{THR:08x}")
    e(f"  s_mov_b32 s{sOOB}, 0x{OOB:08x}")
    e(f"  s_lshl_b32 s{sW4K}, s{sW}, 12")
    e(f"  s_lshl_b32 s{sLPW}, s{sW}, 14")
    e(f"  s_add_u32 s{sLPW}, s{sLPW}, {LP}")
    e(f"  s_mov_b32 s{sBLK}, 0")
    e(f"  s_mov_b32 s{sFLAG}, 0")
    e(f"  s_mov_b32 s{sOo[0]}, s{sOOB}")
    e(f"  s_mov_b32 s{sOo[1]}, s{sOOB}")
    for x in blockcalc(sBLK):
        e("  " + x.text)
    e("  v_and_b32 v32, 31, v0")
    e("  v_lshrrev_b32 v33, 5, v0")
    e("  v_lshlrev_b32 v34, 6, v33")
    e(f"  v_lshl_or_b32 v{vQD}, v32, 9, v34")
    for i in range(4):
        e(f"  v_add_u32 v34, {2*(i%2)}, v33")
        e("  v_lshlrev_b32 v34, 2, v34")
        e(f"  s_lshl_b32 s{sT[0]}, s{sW}, 1")
        e(f"  s_add_u32 s{sT[0]}, s{sT[0]}, {i//2}")
        e(f"  s_and_b32 s{sT[0]}, s{sT[0]}, 3")
        e(f"  v_or_b32 v34, s{sT[0]}, v34")
        e("  v_xor_b32 v34, v34, v32")
        e("  v_lshlrev_b32 v34, 4, v34")
        e(f"  v_lshl_or_b32 v{vDMA+i}, v33, 9, v34")
    e("  v_and_b32 v34, 3, v32")
    e("  v_lshlrev_b32 v34, 2, v34")
    e("  v_bfe_u32 v35, v32, 2, 2")
    e("  v_or_b32 v34, v34, v35")
    e("  v_lshlrev_b32 v35, 2, v33")
    e("  v_xor_b32 v34, v34, v35")
    e("  v_lshlrev_b32 v34, 4, v34")
    e("  v_lshl_or_b32 v34, v32, 9, v34")
    for t in range(8):
        c = ((t // 4) * 8 + t % 4) * 16
        e(f"  v_xor_b32 v{vKA+t}, {c}, v34")
    e("  v_bfe_u32 v34, v0, 4, 1")
    e("  v_bfe_u32 v35, v0, 2, 2")
    e("  v_and_b32 v36, 3, v0")
    e("  v_and_b32 v37, 1, v36")
    e("  v_lshl_or_b32 v37, v37, 1, v34")
    e("  v_lshlrev_b32 v38, 2, v35")
    e("  v_or_b32 v38, v38, v33")
    e("  v_xor_b32 v37, v37, v38")
    e("  v_lshlrev_b32 v37, 4, v37")
    e("  v_lshrrev_b32 v36, 1, v36")
    e("  v_lshl_or_b32 v37, v36, 3, v37")
    e("  v_lshl_or_b32 v38, v33, 2, v35")
    e("  v_lshl_or_b32 v37, v38, 9, v37")
    e(f"  v_add_u32 v37, {LV}, v37")
    for Tm in range(4):
        for s in range(2):
            x = (4 * Tm * 16) ^ (2 * s * 16)
            e(f"  v_xor_b32 v{vVA+Tm*2+s}, {x}, v37")
            if s:
                e(f"  v_add_u32 v{vVA+Tm*2+s}, 4096, v{vVA+Tm*2+s}")
    e(f"  v_lshlrev_b32 v{vL16}, 4, v0")
    e("  s_waitcnt lgkmcnt(0)")
    return L


def stamp(k, nb):
    if OPT['stamp'] < 0:
        return []
    L = ["s_memtime s[90:91]", "s_waitcnt lgkmcnt(0)"]
    if nb == 1:
        L.append(f"s_mov_b32 s{60+k}, s90")
    else:
        for b in range(nb):
            L.append(f"s_cmp_eq_u32 s{sBLK}, {b+1}")
            L.append(f"s_cselect_b32 s{60+k+b}, s90, s{60+k+b}")
    return [I(x, 'raw') for x in L]


def stamp_dump():
    if OPT['stamp'] < 0:
        return []
    L = [f"  s_cmp_lg_u32 s2, {OPT['stamp']}", "  s_cbranch_scc1 END", f"  s_cmp_lg_u32 s{sW}, 0", "  s_cbranch_scc1 END",
         "  s_load_dwordx2 s[80:81], s[0:1], 32", "  s_mov_b32 s82, 256", "  s_mov_b32 s83, 0x20000",
         "  v_mov_b32 v33, 0", "  s_waitcnt lgkmcnt(0)"]
    for k in range(16):
        L += [f"  s_sub_u32 s90, s{60+k}, s60", "  v_mov_b32 v32, s90", f"  buffer_store_dword v32, v33, s[80:83], 0 offen offset:{4*k}"]
    L.append("  s_waitcnt vmcnt(0)")
    return L


def main():
    pro = prologue()
    pro = pro[:2] + ["  " + x.text for x in stamp(0, 1)] + pro[2:]
    P = []
    P += dma_group(sK, sKn[2], LK, 'LK0', 'K0')
    P += qload(0) + qload(1)
    P += dma_group(sK, sKn[0], LK + 16384, 'LK1', 'K1')
    P += dma_group(sV, sKn[0], LV + 16384, 'LV1', 'V1')
    P += dma_group(sK, sKn[1], LK + 32768, 'LK2', 'K2')
    frame[0] = 0
    M = schedule(regionM(), budget=24, maxn=6, verbose=True, name='M')
    M += stamp(1, 4)
    M.append(salu(f"s_cmp_eq_u32 s{sBLK}, 4", S(sBLK), [SCC]))
    M.append(I("s_cbranch_scc1 FIN", 'raw', [SCC]))
    body = []
    frame[0] = 0
    seq = []
    for rho in range(3):
        seq += phaseA(rho, rho * 64)
        seq += phaseB(rho, rho * 64 + 32)
    assert frame[0] % NFR == 0
    seq += pre_a0()
    seq += loop_end()
    body = schedule(seq, budget=OPT['budget'], maxn=OPT['maxn'], verbose=True, name='L')
    body.append(salu(f"s_cmp_lt_u32 s{sIT}, 5", S(sIT), [SCC]))
    body.append(I("s_cbranch_scc1 LOOP", 'raw', [SCC]))
    frame[0] = 0
    T = schedule(tail(), budget=OPT['budget'], maxn=OPT['maxn'], verbose=True, name='T')
    T = stamp(5, 3) + T + stamp(8, 3)
    T.append(I("s_branch MREG", 'raw'))
    regions = dict(P=P, M=M, L=body, T=T)
    trace = [('P', 0), ('M', 0)]
    for b in range(3):
        trace += [('L', i) for i in range(5)] + [('T', 0), ('M', 0)]
    resolve(regions, trace)
    out = []
    hdr = open('standalone__mha_softmax__near_ridge.s.ref').read().split('\n')
    for ln in hdr:
        if ln.startswith('; @launch'):
            out.append('; @launch grid=(256,1,1) block=(256,1,1) lds=163840')
        elif ln.startswith('standalone__mha_softmax__near_ridge_kernel:'):
            out.append(ln)
            break
        else:
            out.append(ln)
    out += pro
    out += render(P)
    out.append("MREG:")
    out += render(M)
    out.append("LOOP:")
    out += render(body)
    out += render(T)
    out.append("FIN:")
    out.append("  s_waitcnt vmcnt(0)")
    out += ["  " + x.text for x in stamp(11, 1)]
    out += stamp_dump()
    out.append("END:")
    out.append("  s_endpgm")
    out += rare
    out += """.section .rodata,"a"
.p2align 6
.amdhsa_kernel standalone__mha_softmax__near_ridge_kernel
  .amdhsa_next_free_vgpr 512
  .amdhsa_next_free_sgpr 102
  .amdhsa_accum_offset 256
  .amdhsa_group_segment_fixed_size 0
  .amdhsa_kernarg_size 48
  .amdhsa_user_sgpr_count 2
  .amdhsa_user_sgpr_kernarg_segment_ptr 1
  .amdhsa_system_sgpr_workgroup_id_x 1
.end_amdhsa_kernel""".split('\n')
    open(sys.argv[1], 'w').write('\n'.join(out) + '\n')


main()
```

```python
import sys, struct
from gen_core import *

OPT = dict(stamp=-1, dsp=2, pfd=4, budget=22, maxn=5, betaA=10, betaB=10, nt_o=0, nt_q=0, qpf=0, stage=0)
for a in sys.argv[2:]:
    k, v = a.split('=')
    OPT[k] = int(v)

QBYTES = 96468992
KBYTES = 67108864
OOB = 0x80000000
CF = struct.unpack('<I', struct.pack('<f', 1.4426950408889634 / 16.0))[0]
THR = struct.unpack('<I', struct.pack('<f', 8.0 * 16.0 / 1.4426950408889634))[0]

vL16, vQD = 0, 1
vDMA = 2
vKA = 6
vVA = 14
vMC = [22, 23]
vTH = [24, 25]
vLS = [26, 27]
vF, vT0, vT1, vT2 = 28, 29, 30, 31
FR = 32
NFR = 6
XP = [56, 64, 72]
XS = [80, 96, 112]
OR = [128, 256 + 128]
QR = [256, 256 + 64]
sQ, sK, sV, sO = 4, 8, 12, 16
sW, sW4K, sC, sTHR = 20, 21, 22, 23
sIT, sBLK, sFLAG = 24, 25, 26
sKa = [28, 29, 30]
sKn = [31, 32, 33]
sVa = [34, 35, 36]
sQn = [39, 40]
sOo = [41, 42]
sX, sSS = 43, 44
sT = [46, 47, 48, 49, 50, 51]
sOt = 52
sQT, sQL, sQB = 56, 57, 58
LK, LV, LP = 0, 49152, 98304

rare = []
frame = [0]


def mfma(d, a, b, c):
    ctext = reg(d, 16) if c else '0'
    rd = list(range(a, a + 4)) + list(range(b, b + 4)) + (list(range(d, d + 16)) if c else [])
    return I(f"v_mfma_f32_32x32x16_bf16 {reg(d,16)}, {reg(a,4)}, {reg(b,4)}, {ctext}", 'mfma', rd, range(d, d + 16),
             srcc=(range(d, d + 16) if c else ()))


def valu(text, rd, wr, kind='valu', **kw):
    return I(text, kind, rd, wr, **kw)


def salu(text, rd=(), wr=(), **kw):
    return I(text, 'salu', rd, wr, **kw)


nfr = [NFR]


def nextfrag():
    f = FR + 4 * (frame[0] % nfr[0])
    frame[0] += 1
    return f


def kfrag(slot, t):
    f = nextfrag()
    off = (t // 8) * 256 + slot * 16384 + LK
    return f, I(f"ds_read_b128 {reg(f,4)}, v{vKA + t % 8} offset:{off}", 'dsr', [vKA + t % 8, f'LK{slot}'],
                range(f, f + 4))


def vfrag(slot, T, kk):
    f = nextfrag()
    r = []
    for s in range(2):
        off = (T // 4) * 256 + kk * 8192 + slot * 16384
        ar = vVA + (T % 4) * 2 + s
        r.append(I(f"ds_read_b64_tr_b16 {reg(f + 2 * s, 2)}, v{ar} offset:{off}", 'dsr', [ar, f'LV{slot}'],
                   range(f + 2 * s, f + 2 * s + 2)))
    return f, r


def dma_group(srd, ssoff, ldsbase, lname, tag, early=None, m0reg=None):
    e = lambda i: None if early is None else early + OPT['dsp'] * i
    l = lambda i: None if early is None else early + OPT['dsp'] * i + 1
    if m0reg is None:
        r = [salu(f"s_add_u32 m0, s{sW4K}, {ldsbase}", S(sW4K), [M0, SCC], early=early, late=l(0))]
    else:
        r = [salu(f"s_mov_b32 m0, s{m0reg}", S(m0reg), [M0], early=early, late=l(0))]
    for i in range(4):
        r.append(I(f"buffer_load_dwordx4 v{vDMA+i}, s[{srd}:{srd+3}], s{ssoff} offen offset:{i*1024} lds", 'dma',
                   [vDMA + i, M0, lname] + S(ssoff), [lname + 'w', 'DMAORD'], tag=tag, early=e(i), late=l(i)))
    return r


def barrier(free, publish, waits, early=None, late=None):
    names = list(free) + list(publish)
    return I("s_barrier", 'bar', names, names + ['BAR'], waits=waits, early=early, late=late)


def maxchain(sb, dst, tmp):
    r = []
    r.append(valu(f"v_max3_f32 v{dst}, v{sb}, v{sb+1}, v{sb+2}", V(sb, 3), [dst]))
    r.append(valu(f"v_max3_f32 v{tmp}, v{sb+3}, v{sb+4}, v{sb+5}", V(sb + 3, 3), [tmp]))
    r.append(valu(f"v_max3_f32 v{dst}, v{dst}, v{sb+6}, v{sb+7}", [dst] + V(sb + 6, 2), [dst]))
    r.append(valu(f"v_max3_f32 v{tmp}, v{tmp}, v{sb+8}, v{sb+9}", [tmp] + V(sb + 8, 2), [tmp]))
    r.append(valu(f"v_max3_f32 v{dst}, v{dst}, v{sb+10}, v{sb+11}", [dst] + V(sb + 10, 2), [dst]))
    r.append(valu(f"v_max3_f32 v{tmp}, v{tmp}, v{sb+12}, v{sb+13}", [tmp] + V(sb + 12, 2), [tmp]))
    r.append(valu(f"v_max3_f32 v{dst}, v{dst}, v{sb+14}, v{sb+15}", [dst] + V(sb + 14, 2), [dst]))
    r.append(valu(f"v_max_f32 v{dst}, v{dst}, v{tmp}", [dst, tmp], [dst]))
    r.append(valu(f"v_mov_b32 v{tmp}, v{dst}", [dst], [tmp]))
    r.append(valu(f"v_permlane32_swap_b32 v{dst}, v{tmp}", [dst, tmp], [dst, tmp]))
    r.append(valu(f"v_max_f32 v{dst}, v{dst}, v{tmp}", [dst, tmp], [dst]))
    return r


site = [0]


def rescale_O(R, freg, tmp):
    L = []
    if R == 0:
        for i in range(128):
            L.append(f"  v_mul_f32 v{128+i}, v{128+i}, v{freg}")
    else:
        for i in range(0, 128, 2):
            L.append(f"  v_accvgpr_read_b32 v{tmp}, a{128+i}")
            L.append(f"  v_accvgpr_read_b32 v{tmp+1}, a{129+i}")
            L.append(f"  v_mul_f32 v{tmp}, v{tmp}, v{freg}")
            L.append(f"  v_mul_f32 v{tmp+1}, v{tmp+1}, v{freg}")
            L.append(f"  v_accvgpr_write_b32 a{128+i}, v{tmp}")
            L.append(f"  v_accvgpr_write_b32 a{129+i}, v{tmp+1}")
    return L


def softmax(R, sb, pb, check=True):
    tm, tmp = (vT0, vT1) if R == 1 else (vT2, vT1)
    r = []
    mc, th, ls = vMC[R], vTH[R], vLS[R]
    if check:
        r += maxchain(sb, tm, tmp)
        r.append(valu(f"v_cmp_gt_f32 vcc, v{tm}, v{th}", [tm, th], [VCC]))
        k = site[0]
        site[0] += 1
        st = [mc, th, ls, tm, tmp, VCC, SCC]
        if R == 1:
            st_w = st + list(range(OR[1], OR[1] + 128)) + [pb, pb + 1]
        else:
            st_w = st + [vF] + S(sFLAG)
        r.append(I(f"s_cbranch_vccnz RARE{k}\nRET{k}:", 'br', st_w, st_w))
        L = [f"RARE{k}:", "  s_nop 7", "  s_nop 7",
             f"  v_mul_f32 v{tmp}, s{sC}, v{tm}",
             f"  v_max_f32 v{tmp}, v{tmp}, v{mc}",
             f"  v_add_f32 v{tm}, s{sTHR}, v{tm}",
             f"  v_max_f32 v{th}, v{th}, v{tm}",
             f"  v_sub_f32 v{tm}, v{mc}, v{tmp}",
             f"  v_exp_f32 v{tm}, v{tm}",
             f"  v_mov_b32 v{mc}, v{tmp}",
             "  s_nop 1",
             f"  v_mul_f32 v{ls}, v{ls}, v{tm}"]
        if R == 1:
            L += rescale_O(1, tm, pb)
        else:
            L += [f"  v_mov_b32 v{vF}, v{tm}", f"  s_mov_b32 s{sFLAG}, 1"]
        L += ["  s_nop 3", f"  s_branch RET{k}"]
        rare.extend(L)
    for i in range(16):
        r.append(valu(f"v_fma_f32 v{sb+i}, v{sb+i}, s{sC}, -v{mc}", [sb + i, mc] + S(sC), [sb + i]))
        r.append(valu(f"v_exp_f32 v{sb+i}, v{sb+i}", [sb + i], [sb + i], kind='trans'))
        r.append(valu(f"v_add_f32 v{ls}, v{ls}, v{sb+i}", [ls, sb + i], [ls]))
        if i % 2:
            r.append(valu(f"v_cvt_pk_bf16_f32 v{pb+i//2}, v{sb+i-1}, v{sb+i}", [sb + i - 1, sb + i], [pb + i // 2]))
    return r


def applyF():
    k = site[0]
    site[0] += 1
    st = list(range(OR[0], OR[0] + 128)) + [vF, SCC] + S(sFLAG)
    r = [salu(f"s_cmp_lg_u32 s{sFLAG}, 0", S(sFLAG), [SCC]),
         I(f"s_cbranch_scc1 RARE{k}\nRET{k}:", 'br', st, st)]
    L = [f"RARE{k}:", "  s_nop 7", "  s_nop 7"] + rescale_O(0, vF, None) + [f"  s_mov_b32 s{sFLAG}, 0", "  s_nop 3",
                                                                           f"  s_branch RET{k}"]
    rare.extend(L)
    return r


def qk(slot, s0, s1, skip=0):
    r = []
    for t in range(16):
        f, rd = kfrag(slot, t)
        if t >= skip:
            r.append(rd)
        r.append(mfma(s0, f, QR[0] + 4 * t, t > 0))
        r.append(mfma(s1, f, QR[1] + 4 * t, t > 0))
    return r


def pre_a0():
    sv = frame[0]
    frame[0] = 0
    r = [kfrag(1, t)[1] for t in range(OPT['pfd'])]
    frame[0] = sv
    return r


def pv(slot, p0, p1, Rs=(0, 1)):
    r = []
    for T in range(8):
        for kk in range(2):
            f, rd = vfrag(slot, T, kk)
            r += rd
            for R in Rs:
                r.append(mfma(OR[R] + 16 * T, f, (p0, p1)[R] + 4 * kk, True))
    return r


def phaseA(rho, g0, last=False):
    r = applyF()
    body = qk((rho + 1) % 3, XS[(rho + 2) % 3], XS[(rho + 1) % 3], skip=(OPT['pfd'] if rho == 0 else 0))
    sm = softmax(1, XS[rho], XP[(rho + 2) % 3])
    sl = (rho + 2) % 3
    so = sKn[0] if (last and rho == 2) else sVa[rho]
    xw = ['QA'] if (last and rho == 0) else []
    bar = [barrier([f'LV{sl}'], [f'LV{rho}'] + (['LQA'] if xw else []), [f'V{rho}'] + xw, early=g0 + OPT['betaA'])]
    bar += dma_group(sV, so, LV + sl * 16384, f'LV{sl}', f'V{sl}', early=g0 + OPT['betaA'])
    return r + sm + bar + body


def phaseB(rho, g0, last=False):
    body = pv(rho, XP[rho], XP[(rho + 2) % 3])
    sm = softmax(0, XS[(rho + 2) % 3], XP[(rho + 1) % 3])
    sl = (rho + 1) % 3
    g = (rho + 2) % 3
    bar = [barrier([f'LK{sl}'], [f'LK{g}'], [f'K{g}'], early=g0 + OPT['betaB'])]
    bar += dma_group(sK, sKn[rho] if last else sKa[rho], LK + sl * 16384, f'LK{sl}', f'K{sl}', early=g0 + OPT['betaB'])
    if rho == 1 and not last:
        bar += dma_group(sQ, sQT, None, 'LQA', 'QA', early=g0 + OPT['betaB'] + 10, m0reg=sQL)
    if rho == 0 and last and OPT['qpf']:
        for i in range(4):
            bar.append(I(f"buffer_load_dword v{vL16}, v{vQD}, s[{sQ}:{sQ+3}], s{sQn[1]} offen offset:{i*128}", 'vld',
                         [vQD] + S(sQn[1]), ['DMAORD', 'PFD'], early=g0 + OPT['betaB'] + 10 + 2 * i,
                         late=g0 + OPT['betaB'] + 11 + 2 * i))
    return sm + bar + body


def qload(R, early=None):
    r = []
    nt = ' nt' if OPT['nt_q'] else ''
    for t in range(16):
        d = QR[R] + 4 * t
        off = (t // 4) * 128 + (t % 4) * 16
        r.append(I(f"buffer_load_dwordx4 {reg(d,4)}, v{vQD}, s[{sQ}:{sQ+3}], s{sQn[R]} offen offset:{off}{nt}", 'vld',
                   [vQD] + S(sQn[R]), list(range(d, d + 4)) + ['DMAORD'], early=early))
    return r


def tail():
    r = applyF()
    r.append(barrier([], ['LV0'], ['V0']))
    r += qload(1)
    ta = XS[2]
    for i in range(8):
        r.append(valu(f"v_add_u32 v{ta+i}, s{sLPW}, v{vKA+i}", [vKA + i, 'PFD'] + S(sLPW), [ta + i]))
    for t in range(16):
        d = QR[0] + 4 * t
        r.append(I(f"ds_read_b128 {reg(d,4)}, v{ta + t % 8} offset:{(t//8)*256}", 'dsr', [ta + t % 8, 'LQA'],
                   list(range(d, d + 4)) + ['LPW']))
    sm = softmax(1, XS[0], XP[2])
    r += sm
    r += pv(0, XP[0], XP[2], Rs=(0,))
    r += pv(0, XP[0], XP[2], Rs=(1,))
    for R, dst, tmp in ((0, vF, vT2), (1, vT1, vT0)):
        r.append(valu(f"v_mov_b32 v{tmp}, v{vLS[R]}", [vLS[R]], [tmp]))
        r.append(valu(f"v_permlane32_swap_b32 v{vLS[R]}, v{tmp}", [vLS[R], tmp], [vLS[R], tmp]))
        r.append(valu(f"v_add_f32 v{tmp}, v{tmp}, v{vLS[R]}", [vLS[R], tmp], [tmp]))
        r.append(valu(f"v_rcp_f32 v{dst}, v{tmp}", [tmp], [dst], kind='trans'))
    return r


def blockcalc(rreg):
    t0, t1, t2, t3, t4, t5 = sT
    r = []
    a = lambda txt, rd, wr: r.append(salu(txt, rd, wr))
    a(f"s_lshl_b32 s{t0}, s{rreg}, 5", S(rreg), S(t0) + [SCC])
    a(f"s_add_u32 s{t0}, s{t0}, s{sSS}", S(t0) + S(sSS), S(t0) + [SCC])
    a(f"s_mul_i32 s{t1}, s{t0}, 171", S(t0), S(t1))
    a(f"s_lshr_b32 s{t1}, s{t1}, 9", S(t1), S(t1) + [SCC])
    a(f"s_mul_i32 s{t2}, s{t1}, 3", S(t1), S(t2))
    a(f"s_sub_u32 s{t2}, s{t0}, s{t2}", S(t0) + S(t2), S(t2) + [SCC])
    a(f"s_lshl_b32 s{t1}, s{t1}, 3", S(t1), S(t1) + [SCC])
    a(f"s_add_u32 s{t1}, s{t1}, s{sX}", S(t1) + S(sX), S(t1) + [SCC])
    a(f"s_lshl_b32 s{t3}, s{t1}, 18", S(t1), S(t3) + [SCC])
    a(f"s_add_u32 s{sKn[2]}, s{t3}, s{sW4K}", S(t3) + S(sW4K), S(sKn[2]) + [SCC])
    a(f"s_mul_i32 s{t3}, s{t1}, 376832", S(t1), S(t3))
    a(f"s_lshl_b32 s{t4}, s{t2}, 17", S(t2), S(t4) + [SCC])
    a(f"s_add_u32 s{t3}, s{t3}, s{t4}", S(t3) + S(t4), S(t3) + [SCC])
    a(f"s_add_u32 s{sQB}, s{t3}, s{sW4K}", S(t3) + S(sW4K), S(sQB) + [SCC])
    a(f"s_lshl_b32 s{t4}, s{sW}, 15", S(sW), S(t4) + [SCC])
    a(f"s_add_u32 s{sQn[0]}, s{t3}, s{t4}", S(t3) + S(t4), S(sQn[0]) + [SCC])
    a(f"s_add_u32 s{sQn[1]}, s{sQn[0]}, 16384", S(sQn[0]), S(sQn[1]) + [SCC])
    a(f"s_lshl_b32 s{t4}, s{t2}, 2", S(t2), S(t4) + [SCC])
    a(f"s_add_u32 s{t4}, s{t4}, s{sW}", S(t4) + S(sW), S(t4) + [SCC])
    a(f"s_cmp_eq_u32 s{t4}, 11", S(t4), [SCC])
    a(f"s_cselect_b32 s{sQn[1]}, s{sOOB}, s{sQn[1]}", S(sQn[1]) + S(sOOB) + [SCC], S(sQn[1]))
    a(f"s_cmp_ge_u32 s{rreg}, 3", S(rreg), [SCC])
    a(f"s_cselect_b32 s{sQn[0]}, s{sOOB}, s{sQn[0]}", S(sQn[0]) + S(sOOB) + [SCC], S(sQn[0]))
    a(f"s_cselect_b32 s{sQn[1]}, s{sOOB}, s{sQn[1]}", S(sQn[1]) + S(sOOB) + [SCC], S(sQn[1]))
    a(f"s_cselect_b32 s{sKn[2]}, s{sOOB}, s{sKn[2]}", S(sKn[2]) + S(sOOB) + [SCC], S(sKn[2]))
    a(f"s_cselect_b32 s{sQB}, s{sOOB}, s{sQB}", S(sQB) + S(sOOB) + [SCC], S(sQB))
    a(f"s_mov_b32 s{sQT}, s{sQB}", S(sQB), S(sQT))
    a(f"s_add_u32 s{sQL}, s{sW4K}, {LP}", S(sW4K), S(sQL) + [SCC])
    a(f"s_add_u32 s{sKn[0]}, s{sKn[2]}, 16384", S(sKn[2]), S(sKn[0]) + [SCC])
    a(f"s_add_u32 s{sKn[1]}, s{sKn[2]}, 32768", S(sKn[2]), S(sKn[1]) + [SCC])
    return r


sOOB = 27


def regionM():
    r = []
    inv = [vF, vT1]
    TA = XS[2]
    TC = XP[1]
    WA = XP[2]
    r.append(barrier(['LV0'], [], []))
    r += dma_group(sV, sKn[2], LV, 'LV0', 'V0')
    wa, ra, ga, tt = WA, WA + 4, WA + 5, WA + 6
    a = lambda txt, rd, wr: r.append(valu(txt, rd, wr))
    a(f"v_bfe_u32 v{tt}, v{vQD}, 6, 1", [vQD], [tt])
    a(f"v_lshrrev_b32 v{ra}, 9, v{vQD}", [vQD], [ra])
    a(f"v_lshl_or_b32 v{tt}, v{tt}, 5, v{ra}", [tt, ra], [tt])
    a(f"v_and_b32 v{ra}, 31, v{tt}", [tt], [ra])
    a(f"v_lshrrev_b32 v{ga}, 5, v{tt}", [tt], [ga])
    a(f"v_lshlrev_b32 v{ga}, 1, v{ga}", [ga], [ga])
    a(f"v_and_b32 v{wa}, 7, v{ra}", [ra], [wa])
    a(f"v_xor_b32 v{wa}, v{wa}, v{ga}", [wa, ga], [wa])
    a(f"v_lshlrev_b32 v{wa}, 4, v{wa}", [wa], [wa])
    a(f"v_lshl_or_b32 v{wa}, v{ra}, 9, v{wa}", [wa, ra], [wa])
    a(f"v_add_u32 v{wa}, s{sLPW}, v{wa}", [wa] + S(sLPW), [wa])
    a(f"v_xor_b32 v{wa+1}, 16, v{wa}", [wa], [wa + 1])
    a(f"v_xor_b32 v{wa+2}, 64, v{wa}", [wa], [wa + 2])
    a(f"v_xor_b32 v{wa+3}, 0x50, v{wa}", [wa], [wa + 3])
    a(f"v_lshrrev_b32 v{ra}, 3, v{tt}", [tt], [ra])
    a(f"v_and_b32 v{ga}, 7, v{tt}", [tt], [ga])
    a(f"v_xor_b32 v{tt}, v{ra}, v{ga}", [ra, ga], [tt])
    a(f"v_lshlrev_b32 v{ga}, 4, v{ga}", [ga], [ga])
    a(f"v_lshl_or_b32 v{ga}, v{ra}, 9, v{ga}", [ga, ra], [ga])
    a(f"v_lshlrev_b32 v{tt}, 4, v{tt}", [tt], [tt])
    a(f"v_lshl_or_b32 v{ra}, v{ra}, 9, v{tt}", [ra, tt], [ra])
    a(f"v_add_u32 v{ra}, s{sLPW}, v{ra}", [ra] + S(sLPW), [ra])
    TZ = XP[0]
    for i in range(4):
        a(f"v_mov_b32 v{TZ+i}, 0", [], [TZ + i])
    RBUF = [FR + 16, FR + 20, XP[0] + 4]
    nt = ' nt' if OPT['nt_o'] else ''
    rb = 0
    nfr[0] = 4
    frame[0] = 0
    qkl = qk(0, XS[1], XS[0])
    nfr[0] = NFR
    for R in range(2):
        if R == 1:
            r.append(barrier([], ['LK0', 'LK1'], ['K0', 'K1']))
        for T in range(8):
            o = OR[R] + 16 * T
            if R == 1:
                r += qkl[6 * T:6 * T + 6]
                for i in range(16):
                    a(f"v_accvgpr_read_b32 v{TA+i}, {reg(o+i)}", [o + i], [TA + i])
                src = TA
            else:
                src = o
            for i in range(0, 16, 2):
                a(f"v_pk_mul_f32 v[{src+i}:{src+i+1}], v[{src+i}:{src+i+1}], v[{inv[R]}:{inv[R]+1}] op_sel_hi:[1,0]",
                  [src + i, src + i + 1, inv[R]], [src + i, src + i + 1])
            for i in range(8):
                a(f"v_cvt_pk_bf16_f32 v{TC+i}, v{src+2*i}, v{src+2*i+1}", [src + 2 * i, src + 2 * i + 1], [TC + i])
            for u in range(2):
                ar = wa + (T % 2) * 2 + u
                off = (T // 2) * 128
                r.append(I(f"ds_write_b128 v{ar}, v[{TC+4*u}:{TC+4*u+3}] offset:{off}", 'dsw',
                           [ar] + V(TC + 4 * u, 4), ['LPW']))
            r.append(mfma(o, TZ, TZ, False))
        for aa in range(4):
            r.append(salu(f"s_add_u32 s{sOt+aa}, s{sOo[R]}, {aa*4096}", S(sOo[R]), S(sOt + aa) + [SCC]))
            for b in range(4):
                t = RBUF[rb % 3]
                rb += 1
                r.append(I(f"ds_read_b128 v[{t}:{t+3}], v{ra} offset:{aa*4096+b*128}", 'dsr', [ra, 'LPW'], V(t, 4)))
                r.append(I(f"buffer_store_dwordx4 v[{t}:{t+3}], v{ga}, s[{sO}:{sO+3}], s{sOt+aa} offen offset:{b*128}{nt}",
                           'vst', [ga] + V(t, 4) + S(sOt + aa), ['DMAORD']))
    for R, sb in ((0, XS[1]), (1, XS[0])):
        tm, tmp = vT0, vT2
        r += maxchain(sb, tm, tmp)
        a(f"v_mul_f32 v{vMC[R]}, s{sC}, v{tm}", [tm] + S(sC), [vMC[R]])
        a(f"v_add_f32 v{vTH[R]}, s{sTHR}, v{tm}", [tm] + S(sTHR), [vTH[R]])
        a(f"v_mov_b32 v{vLS[R]}, 0", [], [vLS[R]])
    r += softmax(0, XS[1], XP[0], check=False)
    r.append(salu(f"s_add_u32 s{sT[5]}, s{sKn[2]}, 49152", S(sKn[2]), S(sT[5]) + [SCC]))
    r.append(barrier(['LK0'], [], []))
    r += dma_group(sK, sT[5], LK, 'LK0', 'K0')
    b = lambda txt, rd, wr: r.append(salu(txt, rd, wr))
    for i in range(2):
        b(f"s_mov_b32 s{sOo[i]}, s{sQn[i]}", S(sQn[i]), S(sOo[i]))
    for i in range(3):
        b(f"s_add_u32 s{sKa[i]}, s{sKn[2]}, {(4+i)*16384}", S(sKn[2]), S(sKa[i]) + [SCC])
        b(f"s_add_u32 s{sVa[i]}, s{sKn[2]}, {(2+i)*16384}", S(sKn[2]), S(sVa[i]) + [SCC])
    b(f"s_add_u32 s{sBLK}, s{sBLK}, 1", S(sBLK), S(sBLK) + [SCC])
    b(f"s_mov_b32 s{sIT}, 0", [], S(sIT))
    b(f"s_mov_b32 s{sFLAG}, 0", [], S(sFLAG))
    r += blockcalc(sBLK)
    r += pre_a0()
    return r


sLPW = 45


def loop_end():
    r = []
    b = lambda txt, rd, wr: r.append(salu(txt, rd, wr))
    for i in range(3):
        b(f"s_add_u32 s{sKa[i]}, s{sKa[i]}, 49152", S(sKa[i]), S(sKa[i]) + [SCC])
        b(f"s_add_u32 s{sVa[i]}, s{sVa[i]}, 49152", S(sVa[i]), S(sVa[i]) + [SCC])
    b(f"s_add_u32 s{sQT}, s{sQT}, 32768", S(sQT), S(sQT) + [SCC])
    b(f"s_add_u32 s{sQL}, s{sQL}, 16384", S(sQL), S(sQL) + [SCC])
    b(f"s_add_u32 s{sIT}, s{sIT}, 1", S(sIT), S(sIT) + [SCC])
    return r


def prologue():
    L = []
    e = L.append
    e("  s_cmp_ge_u32 s2, 256")
    e("  s_cbranch_scc1 END")
    e(f"  s_load_dwordx2 s[{sQ}:{sQ+1}], s[0:1], 0")
    e(f"  s_load_dwordx2 s[{sK}:{sK+1}], s[0:1], 8")
    e(f"  s_load_dwordx2 s[{sV}:{sV+1}], s[0:1], 16")
    e(f"  s_load_dwordx2 s[{sO}:{sO+1}], s[0:1], 24")
    e(f"  s_and_b32 s{sX}, s2, 7")
    e(f"  s_lshr_b32 s{sSS}, s2, 3")
    e("  v_lshrrev_b32 v1, 6, v0")
    e("  v_and_b32 v0, 63, v0")
    e("  s_nop 0")
    e(f"  v_readfirstlane_b32 s{sW}, v1")
    e(f"  s_mov_b32 s{sQ+2}, {QBYTES}")
    e(f"  s_mov_b32 s{sQ+3}, 0x20000")
    e(f"  s_mov_b32 s{sK+2}, {KBYTES}")
    e(f"  s_mov_b32 s{sK+3}, 0x20000")
    e(f"  s_mov_b32 s{sV+2}, {KBYTES}")
    e(f"  s_mov_b32 s{sV+3}, 0x20000")
    e(f"  s_mov_b32 s{sO+2}, {QBYTES}")
    e(f"  s_mov_b32 s{sO+3}, 0x20000")
    e(f"  s_mov_b32 s{sC}, 0x{CF:08x}")
    e(f"  s_mov_b32 s{sTHR}, 0x{THR:08x}")
    e(f"  s_mov_b32 s{sOOB}, 0x{OOB:08x}")
    e(f"  s_lshl_b32 s{sW4K}, s{sW}, 12")
    e(f"  s_lshl_b32 s{sLPW}, s{sW}, 14")
    e(f"  s_add_u32 s{sLPW}, s{sLPW}, {LP}")
    e(f"  s_mov_b32 s{sBLK}, 0")
    e(f"  s_mov_b32 s{sFLAG}, 0")
    e(f"  s_mov_b32 s{sOo[0]}, s{sOOB}")
    e(f"  s_mov_b32 s{sOo[1]}, s{sOOB}")
    for x in blockcalc(sBLK):
        e("  " + x.text)
    e("  v_and_b32 v32, 31, v0")
    e("  v_lshrrev_b32 v33, 5, v0")
    e("  v_lshlrev_b32 v34, 6, v33")
    e(f"  v_lshl_or_b32 v{vQD}, v32, 9, v34")
    for i in range(4):
        e(f"  v_add_u32 v34, {2*(i%2)}, v33")
        e("  v_lshlrev_b32 v34, 2, v34")
        e(f"  s_lshl_b32 s{sT[0]}, s{sW}, 1")
        e(f"  s_add_u32 s{sT[0]}, s{sT[0]}, {i//2}")
        e(f"  s_and_b32 s{sT[0]}, s{sT[0]}, 3")
        e(f"  v_or_b32 v34, s{sT[0]}, v34")
        e("  v_xor_b32 v34, v34, v32")
        e("  v_lshlrev_b32 v34, 4, v34")
        e(f"  v_lshl_or_b32 v{vDMA+i}, v33, 9, v34")
    e("  v_and_b32 v34, 3, v32")
    e("  v_lshlrev_b32 v34, 2, v34")
    e("  v_bfe_u32 v35, v32, 2, 2")
    e("  v_or_b32 v34, v34, v35")
    e("  v_lshlrev_b32 v35, 2, v33")
    e("  v_xor_b32 v34, v34, v35")
    e("  v_lshlrev_b32 v34, 4, v34")
    e("  v_lshl_or_b32 v34, v32, 9, v34")
    for t in range(8):
        c = ((t // 4) * 8 + t % 4) * 16
        e(f"  v_xor_b32 v{vKA+t}, {c}, v34")
    e("  v_bfe_u32 v34, v0, 4, 1")
    e("  v_bfe_u32 v35, v0, 2, 2")
    e("  v_and_b32 v36, 3, v0")
    e("  v_and_b32 v37, 1, v36")
    e("  v_lshl_or_b32 v37, v37, 1, v34")
    e("  v_lshlrev_b32 v38, 2, v35")
    e("  v_or_b32 v38, v38, v33")
    e("  v_xor_b32 v37, v37, v38")
    e("  v_lshlrev_b32 v37, 4, v37")
    e("  v_lshrrev_b32 v36, 1, v36")
    e("  v_lshl_or_b32 v37, v36, 3, v37")
    e("  v_lshl_or_b32 v38, v33, 2, v35")
    e("  v_lshl_or_b32 v37, v38, 9, v37")
    e(f"  v_add_u32 v37, {LV}, v37")
    for Tm in range(4):
        for s in range(2):
            x = (4 * Tm * 16) ^ (2 * s * 16)
            e(f"  v_xor_b32 v{vVA+Tm*2+s}, {x}, v37")
            if s:
                e(f"  v_add_u32 v{vVA+Tm*2+s}, 4096, v{vVA+Tm*2+s}")
    e("  s_waitcnt lgkmcnt(0)")
    return L


def stamp(k, nb):
    if OPT['stamp'] < 0:
        return []
    L = ["s_memtime s[90:91]", "s_waitcnt lgkmcnt(0)"]
    if nb == 1:
        L.append(f"s_mov_b32 s{60+k}, s90")
    else:
        for b in range(nb):
            L.append(f"s_cmp_eq_u32 s{sBLK}, {b+1}")
            L.append(f"s_cselect_b32 s{60+k+b}, s90, s{60+k+b}")
    return [I(x, 'raw') for x in L]


def stamp_dump():
    if OPT['stamp'] < 0:
        return []
    L = [f"  s_cmp_lg_u32 s2, {OPT['stamp']}", "  s_cbranch_scc1 END", f"  s_cmp_lg_u32 s{sW}, 0", "  s_cbranch_scc1 END",
         "  s_load_dwordx2 s[80:81], s[0:1], 32", "  s_mov_b32 s82, 256", "  s_mov_b32 s83, 0x20000",
         "  v_mov_b32 v33, 0", "  s_waitcnt lgkmcnt(0)"]
    for k in range(16):
        L += [f"  s_sub_u32 s90, s{60+k}, s60", "  v_mov_b32 v32, s90", f"  buffer_store_dword v32, v33, s[80:83], 0 offen offset:{4*k}"]
    L.append("  s_waitcnt vmcnt(0)")
    return L


def main():
    pro = prologue()
    pro = pro[:2] + ["  " + x.text for x in stamp(0, 1)] + pro[2:]
    P = []
    P += dma_group(sK, sKn[2], LK, 'LK0', 'K0')
    P += qload(0) + qload(1)
    P += dma_group(sK, sKn[0], LK + 16384, 'LK1', 'K1')
    P += dma_group(sV, sKn[0], LV + 16384, 'LV1', 'V1')
    P += dma_group(sK, sKn[1], LK + 32768, 'LK2', 'K2')
    frame[0] = 0
    M = schedule(regionM(), budget=24, maxn=6, verbose=True, name='M')
    M += stamp(1, 4)
    M.append(salu(f"s_cmp_eq_u32 s{sBLK}, 4", S(sBLK), [SCC]))
    M.append(I("s_cbranch_scc1 FIN", 'raw', [SCC]))
    body = []
    frame[0] = 0
    seq = []
    for rho in range(3):
        seq += phaseA(rho, rho * 64)
        seq += phaseB(rho, rho * 64 + 32)
    assert frame[0] % NFR == 0
    seq += pre_a0()
    seq += loop_end()
    body = schedule(seq, budget=OPT['budget'], maxn=OPT['maxn'], verbose=True, name='L')
    body.append(salu(f"s_cmp_lt_u32 s{sIT}, 4", S(sIT), [SCC]))
    body.append(I("s_cbranch_scc1 LOOP", 'raw', [SCC]))
    frame[0] = 0
    seq = []
    for rho in range(3):
        seq += phaseA(rho, rho * 64, last=True)
        seq += phaseB(rho, rho * 64 + 32, last=True)
    seq += tail()
    T = schedule(seq, budget=OPT['budget'], maxn=OPT['maxn'], verbose=True, name='E')
    T = stamp(5, 3) + T + stamp(8, 3)
    T.append(I("s_branch MREG", 'raw'))
    regions = dict(P=P, M=M, L=body, T=T)
    trace = [('P', 0), ('M', 0)]
    for b in range(3):
        trace += [('L', i) for i in range(4)] + [('T', 0), ('M', 0)]
    resolve(regions, trace)
    out = []
    hdr = open('standalone__mha_softmax__near_ridge.s.ref').read().split('\n')
    for ln in hdr:
        if ln.startswith('; @launch'):
            out.append('; @launch grid=(256,1,1) block=(256,1,1) lds=163840')
        elif ln.startswith('standalone__mha_softmax__near_ridge_kernel:'):
            out.append(ln)
            break
        else:
            out.append(ln)
    out += pro
    out += render(P)
    out.append("MREG:")
    out += render(M)
    out.append("LOOP:")
    out += render(body)
    out += render(T)
    out.append("FIN:")
    out.append("  s_waitcnt vmcnt(0)")
    out += ["  " + x.text for x in stamp(11, 1)]
    out += stamp_dump()
    out.append("END:")
    out.append("  s_endpgm")
    out += rare
    out += """.section .rodata,"a"
.p2align 6
.amdhsa_kernel standalone__mha_softmax__near_ridge_kernel
  .amdhsa_next_free_vgpr 512
  .amdhsa_next_free_sgpr 102
  .amdhsa_accum_offset 256
  .amdhsa_group_segment_fixed_size 0
  .amdhsa_kernarg_size 48
  .amdhsa_user_sgpr_count 2
  .amdhsa_user_sgpr_kernarg_segment_ptr 1
  .amdhsa_system_sgpr_workgroup_id_x 1
.end_amdhsa_kernel""".split('\n')
    open(sys.argv[1], 'w').write('\n'.join(out) + '\n')


main()
```

```python
import sys, struct
from gen_core import *

OPT = dict(qbs=8, stamp=-1, dsp=2, pfd=4, budget=22, maxn=5, betaA=10, betaB=10, nt_o=0, nt_q=0, qpf=0, stage=0)
for a in sys.argv[2:]:
    k, v = a.split('=')
    OPT[k] = int(v)

QBYTES = 96468992
KBYTES = 67108864
OOB = 0x80000000
CF = struct.unpack('<I', struct.pack('<f', 1.4426950408889634 / 16.0))[0]
THR = struct.unpack('<I', struct.pack('<f', 8.0 * 16.0 / 1.4426950408889634))[0]

vL16, vQD = 0, 1
vDMA = 2
vKA = 6
vVA = 14
vMC = [22, 23]
vTH = [24, 25]
vLS = [26, 27]
vF, vT0, vT1, vT2 = 28, 29, 30, 31
FR = 32
NFR = 6
XP = [56, 64, 72]
XS = [80, 96, 112]
OR = [128, 256 + 128]
QR = [256, 256 + 64]
sQ, sK, sV, sO = 4, 8, 12, 16
sW, sW4K, sC, sTHR = 20, 21, 22, 23
sIT, sBLK, sFLAG = 24, 25, 26
sKa = [28, 29, 30]
sKn = [31, 32, 33]
sVa = [34, 35, 36]
sQn = [39, 40]
sOo = [41, 42]
sX, sSS = 43, 44
sT = [46, 47, 48, 49, 50, 51]
sOt = 52
sQT, sQL, sQB = 56, 57, 58
LK, LV, LP = 0, 49152, 98304

rare = []
frame = [0]


def mfma(d, a, b, c):
    ctext = reg(d, 16) if c else '0'
    rd = list(range(a, a + 4)) + list(range(b, b + 4)) + (list(range(d, d + 16)) if c else [])
    return I(f"v_mfma_f32_32x32x16_bf16 {reg(d,16)}, {reg(a,4)}, {reg(b,4)}, {ctext}", 'mfma', rd, range(d, d + 16),
             srcc=(range(d, d + 16) if c else ()))


def valu(text, rd, wr, kind='valu', **kw):
    return I(text, kind, rd, wr, **kw)


def salu(text, rd=(), wr=(), **kw):
    return I(text, 'salu', rd, wr, **kw)


nfr = [NFR]


def nextfrag():
    f = FR + 4 * (frame[0] % nfr[0])
    frame[0] += 1
    return f


def kfrag(slot, t):
    f = nextfrag()
    off = (t // 8) * 256 + slot * 16384 + LK
    return f, I(f"ds_read_b128 {reg(f,4)}, v{vKA + t % 8} offset:{off}", 'dsr', [vKA + t % 8, f'LK{slot}'],
                range(f, f + 4))


def vfrag(slot, T, kk):
    f = nextfrag()
    r = []
    for s in range(2):
        off = (T // 4) * 256 + kk * 8192 + slot * 16384
        ar = vVA + (T % 4) * 2 + s
        r.append(I(f"ds_read_b64_tr_b16 {reg(f + 2 * s, 2)}, v{ar} offset:{off}", 'dsr', [ar, f'LV{slot}'],
                   range(f + 2 * s, f + 2 * s + 2)))
    return f, r


def dma_group(srd, ssoff, ldsbase, lname, tag, early=None, m0reg=None, sp=None):
    if sp is None:
        sp = OPT['dsp']
    e = lambda i: None if early is None else early + sp * i
    l = lambda i: None if early is None else early + sp * i + 1
    if m0reg is None:
        r = [salu(f"s_add_u32 m0, s{sW4K}, {ldsbase}", S(sW4K), [M0, SCC], early=early, late=l(0))]
    else:
        r = [salu(f"s_mov_b32 m0, s{m0reg}", S(m0reg), [M0], early=early, late=l(0))]
    for i in range(4):
        r.append(I(f"buffer_load_dwordx4 v{vDMA+i}, s[{srd}:{srd+3}], s{ssoff} offen offset:{i*1024} lds", 'dma',
                   [vDMA + i, M0, lname] + S(ssoff), [lname + 'w', 'DMAORD'], tag=tag, early=e(i), late=l(i)))
    return r


def barrier(free, publish, waits, early=None, late=None):
    names = list(free) + list(publish)
    return I("s_barrier", 'bar', names, names + ['BAR'], waits=waits, early=early, late=late)


def maxchain(sb, dst, tmp):
    r = []
    r.append(valu(f"v_max3_f32 v{dst}, v{sb}, v{sb+1}, v{sb+2}", V(sb, 3), [dst]))
    r.append(valu(f"v_max3_f32 v{tmp}, v{sb+3}, v{sb+4}, v{sb+5}", V(sb + 3, 3), [tmp]))
    r.append(valu(f"v_max3_f32 v{dst}, v{dst}, v{sb+6}, v{sb+7}", [dst] + V(sb + 6, 2), [dst]))
    r.append(valu(f"v_max3_f32 v{tmp}, v{tmp}, v{sb+8}, v{sb+9}", [tmp] + V(sb + 8, 2), [tmp]))
    r.append(valu(f"v_max3_f32 v{dst}, v{dst}, v{sb+10}, v{sb+11}", [dst] + V(sb + 10, 2), [dst]))
    r.append(valu(f"v_max3_f32 v{tmp}, v{tmp}, v{sb+12}, v{sb+13}", [tmp] + V(sb + 12, 2), [tmp]))
    r.append(valu(f"v_max3_f32 v{dst}, v{dst}, v{sb+14}, v{sb+15}", [dst] + V(sb + 14, 2), [dst]))
    r.append(valu(f"v_max_f32 v{dst}, v{dst}, v{tmp}", [dst, tmp], [dst]))
    r.append(valu(f"v_mov_b32 v{tmp}, v{dst}", [dst], [tmp]))
    r.append(valu(f"v_permlane32_swap_b32 v{dst}, v{tmp}", [dst, tmp], [dst, tmp]))
    r.append(valu(f"v_max_f32 v{dst}, v{dst}, v{tmp}", [dst, tmp], [dst]))
    return r


site = [0]


def rescale_O(R, freg, tmp):
    L = []
    if R == 0:
        for i in range(128):
            L.append(f"  v_mul_f32 v{128+i}, v{128+i}, v{freg}")
    else:
        for i in range(0, 128, 2):
            L.append(f"  v_accvgpr_read_b32 v{tmp}, a{128+i}")
            L.append(f"  v_accvgpr_read_b32 v{tmp+1}, a{129+i}")
            L.append(f"  v_mul_f32 v{tmp}, v{tmp}, v{freg}")
            L.append(f"  v_mul_f32 v{tmp+1}, v{tmp+1}, v{freg}")
            L.append(f"  v_accvgpr_write_b32 a{128+i}, v{tmp}")
            L.append(f"  v_accvgpr_write_b32 a{129+i}, v{tmp+1}")
    return L


def softmax(R, sb, pb, check=True):
    tm, tmp = (vT0, vT1) if R == 1 else (vT2, vT1)
    r = []
    mc, th, ls = vMC[R], vTH[R], vLS[R]
    if check:
        r += maxchain(sb, tm, tmp)
        r.append(valu(f"v_cmp_gt_f32 vcc, v{tm}, v{th}", [tm, th], [VCC]))
        k = site[0]
        site[0] += 1
        st = [mc, th, ls, tm, tmp, VCC, SCC]
        if R == 1:
            st_w = st + list(range(OR[1], OR[1] + 128)) + [pb, pb + 1]
        else:
            st_w = st + [vF] + S(sFLAG)
        r.append(I(f"s_cbranch_vccnz RARE{k}\nRET{k}:", 'br', st_w, st_w))
        L = [f"RARE{k}:", "  s_nop 7", "  s_nop 7",
             f"  v_mul_f32 v{tmp}, s{sC}, v{tm}",
             f"  v_max_f32 v{tmp}, v{tmp}, v{mc}",
             f"  v_add_f32 v{tm}, s{sTHR}, v{tm}",
             f"  v_max_f32 v{th}, v{th}, v{tm}",
             f"  v_sub_f32 v{tm}, v{mc}, v{tmp}",
             f"  v_exp_f32 v{tm}, v{tm}",
             f"  v_mov_b32 v{mc}, v{tmp}",
             "  s_nop 1",
             f"  v_mul_f32 v{ls}, v{ls}, v{tm}"]
        if R == 1:
            L += rescale_O(1, tm, pb)
        else:
            L += [f"  v_mov_b32 v{vF}, v{tm}", f"  s_mov_b32 s{sFLAG}, 1"]
        L += ["  s_nop 3", f"  s_branch RET{k}"]
        rare.extend(L)
    for i in range(16):
        r.append(valu(f"v_fma_f32 v{sb+i}, v{sb+i}, s{sC}, -v{mc}", [sb + i, mc] + S(sC), [sb + i]))
        r.append(valu(f"v_exp_f32 v{sb+i}, v{sb+i}", [sb + i], [sb + i], kind='trans'))
        r.append(valu(f"v_add_f32 v{ls}, v{ls}, v{sb+i}", [ls, sb + i], [ls]))
        if i % 2:
            r.append(valu(f"v_cvt_pk_bf16_f32 v{pb+i//2}, v{sb+i-1}, v{sb+i}", [sb + i - 1, sb + i], [pb + i // 2]))
    return r


def applyF():
    k = site[0]
    site[0] += 1
    st = list(range(OR[0], OR[0] + 128)) + [vF, SCC] + S(sFLAG)
    r = [salu(f"s_cmp_lg_u32 s{sFLAG}, 0", S(sFLAG), [SCC]),
         I(f"s_cbranch_scc1 RARE{k}\nRET{k}:", 'br', st, st)]
    L = [f"RARE{k}:", "  s_nop 7", "  s_nop 7"] + rescale_O(0, vF, None) + [f"  s_mov_b32 s{sFLAG}, 0", "  s_nop 3",
                                                                           f"  s_branch RET{k}"]
    rare.extend(L)
    return r


def qk(slot, s0, s1, skip=0, Rs=(0, 1)):
    r = []
    for t in range(16):
        f, rd = kfrag(slot, t)
        if t >= skip:
            r.append(rd)
        for R in Rs:
            r.append(mfma((s0, s1)[R], f, QR[R] + 4 * t, t > 0))
    return r


def pre_a0():
    sv = frame[0]
    frame[0] = 0
    r = [kfrag(1, t)[1] for t in range(OPT['pfd'])]
    frame[0] = sv
    return r


def pv(slot, p0, p1, Rs=(0, 1)):
    r = []
    for T in range(8):
        for kk in range(2):
            f, rd = vfrag(slot, T, kk)
            r += rd
            for R in Rs:
                r.append(mfma(OR[R] + 16 * T, f, (p0, p1)[R] + 4 * kk, True))
    return r


def phaseA(rho, g0, last=False):
    r = applyF()
    body = qk((rho + 1) % 3, XS[(rho + 2) % 3], XS[(rho + 1) % 3], skip=(OPT['pfd'] if rho == 0 else 0))
    sm = softmax(1, XS[rho], XP[(rho + 2) % 3])
    sl = (rho + 2) % 3
    so = sKn[0] if (last and rho == 2) else sVa[rho]
    xw = ['QA'] if (last and rho == 0) else []
    bar = [barrier([f'LV{sl}'], [f'LV{rho}'] + (['LQA'] if xw else []), [f'V{rho}'] + xw, early=g0 + OPT['betaA'])]
    bar += dma_group(sV, so, LV + sl * 16384, f'LV{sl}', f'V{sl}', early=g0 + OPT['betaA'])
    return r + sm + bar + body


def phaseB(rho, g0, last=False):
    body = pv(rho, XP[rho], XP[(rho + 2) % 3])
    sm = softmax(0, XS[(rho + 2) % 3], XP[(rho + 1) % 3])
    sl = (rho + 1) % 3
    g = (rho + 2) % 3
    bar = [barrier([f'LK{sl}'], [f'LK{g}'], [f'K{g}'], early=g0 + OPT['betaB'])]
    if last and rho == 2:
        bar = qa_read() + bar
        bar[-1].reads |= set(range(QR[0], QR[0] + 64)) | {'LQA'}
        bar[-1].writes |= {'LQA'}
    bar += dma_group(sK, sKn[rho] if last else sKa[rho], LK + sl * 16384, f'LK{sl}', f'K{sl}', early=g0 + OPT['betaB'])
    if rho == 1 and not last:
        bar += dma_group(sQ, sQT, None, 'LQA', 'QA', early=g0 + OPT['betaB'] + 10, m0reg=sQL)
    if rho == 0 and last and OPT['qpf']:
        for i in range(2):
            e0 = g0 + OPT['betaB'] + 10 + 64 * i
            bar.append(valu(f"v_and_b32 v{vL16}, 64, v{vQD}", [vQD], [vL16], early=e0, late=e0 + 1))
            bar.append(valu(f"v_add_u32 v{vL16}, v{vL16}, v{vQD}", [vQD, vL16], [vL16], early=e0, late=e0 + 1))
            bar.append(I(f"buffer_load_dword v{vL16}, v{vL16}, s[{sQ}:{sQ+3}], s{sQn[1]} offen offset:{i*256}", 'vld',
                         [vL16] + S(sQn[1]), ['DMAORD', vL16], early=e0, late=e0 + 1))
    if last and rho == 2:
        for u in range(4):
            bar.append(salu(f"s_add_u32 s{sT[u]}, s{sQB}, {u*32768+16384}", S(sQB), S(sT[u]) + [SCC]))
            bar += dma_group(sQ, sT[u], LP + u * 16384, 'LQA', 'QB', early=g0 + OPT['betaB'] + 8 + OPT['qbs'] * u, sp=OPT['qbs'] // 4)
    return sm + bar + body


def qload(R, early=None):
    r = []
    nt = ' nt' if OPT['nt_q'] else ''
    for t in range(16):
        d = QR[R] + 4 * t
        off = (t // 4) * 128 + (t % 4) * 16
        r.append(I(f"buffer_load_dwordx4 {reg(d,4)}, v{vQD}, s[{sQ}:{sQ+3}], s{sQn[R]} offen offset:{off}{nt}", 'vld',
                   [vQD] + S(sQn[R]), list(range(d, d + 4)) + ['DMAORD'], early=early))
    return r


def q_read(R, ta, base_sgpr=None, base_imm=None):
    r = []
    for i in range(8):
        src = f"s{base_sgpr}" if base_sgpr is not None else f"{base_imm}"
        r.append(valu(f"v_add_u32 v{ta+i}, {src}, v{vKA+i}", [vKA + i] + (S(base_sgpr) if base_sgpr is not None else []), [ta + i]))
    for t in range(16):
        d = QR[R] + 4 * t
        r.append(I(f"ds_read_b128 {reg(d,4)}, v{ta + t % 8} offset:{(t//8)*256}", 'dsr', [ta + t % 8, 'LQA'],
                   list(range(d, d + 4))))
    return r


def qa_read():
    return q_read(0, XS[2], base_sgpr=sLPW)


def tail():
    r = applyF()
    r.append(barrier([], ['LV0'], ['V0']))
    sm = softmax(1, XS[0], XP[2])
    r += sm
    r += pv(0, XP[0], XP[2], Rs=(0,))
    r += pv(0, XP[0], XP[2], Rs=(1,))
    for R, dst, tmp in ((0, vF, vT2), (1, vT1, vT0)):
        r.append(valu(f"v_mov_b32 v{tmp}, v{vLS[R]}", [vLS[R]], [tmp]))
        r.append(valu(f"v_permlane32_swap_b32 v{vLS[R]}, v{tmp}", [vLS[R], tmp], [vLS[R], tmp]))
        r.append(valu(f"v_add_f32 v{tmp}, v{tmp}, v{vLS[R]}", [vLS[R], tmp], [tmp]))
        r.append(valu(f"v_rcp_f32 v{dst}, v{tmp}", [tmp], [dst], kind='trans'))
    return r


def blockcalc(rreg):
    t0, t1, t2, t3, t4, t5 = sT
    r = []
    a = lambda txt, rd, wr: r.append(salu(txt, rd, wr))
    a(f"s_lshl_b32 s{t0}, s{rreg}, 5", S(rreg), S(t0) + [SCC])
    a(f"s_add_u32 s{t0}, s{t0}, s{sSS}", S(t0) + S(sSS), S(t0) + [SCC])
    a(f"s_mul_i32 s{t1}, s{t0}, 171", S(t0), S(t1))
    a(f"s_lshr_b32 s{t1}, s{t1}, 9", S(t1), S(t1) + [SCC])
    a(f"s_mul_i32 s{t2}, s{t1}, 3", S(t1), S(t2))
    a(f"s_sub_u32 s{t2}, s{t0}, s{t2}", S(t0) + S(t2), S(t2) + [SCC])
    a(f"s_lshl_b32 s{t1}, s{t1}, 3", S(t1), S(t1) + [SCC])
    a(f"s_add_u32 s{t1}, s{t1}, s{sX}", S(t1) + S(sX), S(t1) + [SCC])
    a(f"s_lshl_b32 s{t3}, s{t1}, 18", S(t1), S(t3) + [SCC])
    a(f"s_add_u32 s{sKn[2]}, s{t3}, s{sW4K}", S(t3) + S(sW4K), S(sKn[2]) + [SCC])
    a(f"s_mul_i32 s{t3}, s{t1}, 376832", S(t1), S(t3))
    a(f"s_lshl_b32 s{t4}, s{t2}, 17", S(t2), S(t4) + [SCC])
    a(f"s_add_u32 s{t3}, s{t3}, s{t4}", S(t3) + S(t4), S(t3) + [SCC])
    a(f"s_add_u32 s{sQB}, s{t3}, s{sW4K}", S(t3) + S(sW4K), S(sQB) + [SCC])
    a(f"s_lshl_b32 s{t4}, s{sW}, 15", S(sW), S(t4) + [SCC])
    a(f"s_add_u32 s{sQn[0]}, s{t3}, s{t4}", S(t3) + S(t4), S(sQn[0]) + [SCC])
    a(f"s_add_u32 s{sQn[1]}, s{sQn[0]}, 16384", S(sQn[0]), S(sQn[1]) + [SCC])
    a(f"s_lshl_b32 s{t4}, s{t2}, 2", S(t2), S(t4) + [SCC])
    a(f"s_add_u32 s{t4}, s{t4}, s{sW}", S(t4) + S(sW), S(t4) + [SCC])
    a(f"s_cmp_eq_u32 s{t4}, 11", S(t4), [SCC])
    a(f"s_cselect_b32 s{sQn[1]}, s{sOOB}, s{sQn[1]}", S(sQn[1]) + S(sOOB) + [SCC], S(sQn[1]))
    a(f"s_cmp_ge_u32 s{rreg}, 3", S(rreg), [SCC])
    a(f"s_cselect_b32 s{sQn[0]}, s{sOOB}, s{sQn[0]}", S(sQn[0]) + S(sOOB) + [SCC], S(sQn[0]))
    a(f"s_cselect_b32 s{sQn[1]}, s{sOOB}, s{sQn[1]}", S(sQn[1]) + S(sOOB) + [SCC], S(sQn[1]))
    a(f"s_cselect_b32 s{sKn[2]}, s{sOOB}, s{sKn[2]}", S(sKn[2]) + S(sOOB) + [SCC], S(sKn[2]))
    a(f"s_cselect_b32 s{sQB}, s{sOOB}, s{sQB}", S(sQB) + S(sOOB) + [SCC], S(sQB))
    a(f"s_mov_b32 s{sQT}, s{sQB}", S(sQB), S(sQT))
    a(f"s_add_u32 s{sQL}, s{sW4K}, {LP}", S(sW4K), S(sQL) + [SCC])
    a(f"s_add_u32 s{sKn[0]}, s{sKn[2]}, 16384", S(sKn[2]), S(sKn[0]) + [SCC])
    a(f"s_add_u32 s{sKn[1]}, s{sKn[2]}, 32768", S(sKn[2]), S(sKn[1]) + [SCC])
    return r


sOOB = 27


def regionM():
    r = []
    inv = [vF, vT1]
    TA = XS[2]
    TC = XP[1]
    WA = XP[2]
    r.append(barrier(['LV0'], [], []))
    r += dma_group(sV, sKn[2], LV, 'LV0', 'V0')
    wa, ra, ga, tt = WA, WA + 4, WA + 5, WA + 6
    a = lambda txt, rd, wr: r.append(valu(txt, rd, wr))
    a(f"v_bfe_u32 v{ga}, v{vQD}, 6, 1", [vQD], [ga])
    a(f"v_lshrrev_b32 v{ra}, 9, v{vQD}", [vQD], [ra])
    a(f"v_lshl_or_b32 v{tt}, v{ga}, 5, v{ra}", [ga, ra], [tt])
    a(f"v_lshlrev_b32 v{ga}, 1, v{ga}", [ga], [ga])
    a(f"v_and_b32 v{wa}, 7, v{ra}", [ra], [wa])
    a(f"v_xor_b32 v{wa}, v{wa}, v{ga}", [wa, ga], [wa])
    a(f"v_lshlrev_b32 v{wa}, 4, v{wa}", [wa], [wa])
    a(f"v_lshl_or_b32 v{wa}, v{ra}, 7, v{wa}", [wa, ra], [wa])
    a(f"v_add_u32 v{wa}, s{sLOW}, v{wa}", [wa] + S(sLOW), [wa])
    a(f"v_xor_b32 v{wa+1}, 16, v{wa}", [wa], [wa + 1])
    a(f"v_xor_b32 v{wa+2}, 64, v{wa}", [wa], [wa + 2])
    a(f"v_xor_b32 v{wa+3}, 0x50, v{wa}", [wa], [wa + 3])
    a(f"v_lshrrev_b32 v{ra}, 3, v{tt}", [tt], [ra])
    a(f"v_and_b32 v{ga}, 7, v{tt}", [tt], [ga])
    a(f"v_xor_b32 v{ga}, v{ra}, v{ga}", [ra, ga], [ga])
    a(f"v_lshlrev_b32 v{ga}, 4, v{ga}", [ga], [ga])
    a(f"v_lshl_or_b32 v{ga}, v{ra}, 9, v{ga}", [ga, ra], [ga])
    a(f"v_lshlrev_b32 v{tt}, 4, v{tt}", [tt], [tt])
    a(f"v_add_u32 v{ra}, s{sLOW}, v{tt}", [tt] + S(sLOW), [ra])
    TZ = XP[0]
    for i in range(4):
        a(f"v_mov_b32 v{TZ+i}, 0", [], [TZ + i])
    RBUF = [FR + 16, FR + 20, XP[0] + 4]
    nt = ' nt' if OPT['nt_o'] else ''
    rb = 0
    nfr[0] = 4
    frame[0] = 0
    qk0 = qk(0, XS[1], XS[0], Rs=(0,))
    qk1 = qk(0, XS[1], XS[0], Rs=(1,))
    nfr[0] = NFR
    for R in range(2):
        for aa in range(4):
            r.append(salu(f"s_add_u32 s{sOt+aa}, s{sOo[R]}, {aa*4096}", S(sOo[R]), S(sOt + aa) + [SCC]))
        if R == 1:
            r.append(barrier([], ['LK0', 'LK1'], ['K0', 'K1']))
        for T in range(8):
            o = OR[R] + 16 * T
            if R == 1:
                r += qk0[4 * T:4 * T + 4]
                for i in range(16):
                    a(f"v_accvgpr_read_b32 v{TA+i}, {reg(o+i)}", [o + i], [TA + i])
                src = TA
            else:
                src = o
            for i in range(0, 16, 2):
                a(f"v_pk_mul_f32 v[{src+i}:{src+i+1}], v[{src+i}:{src+i+1}], v[{inv[R]}:{inv[R]+1}] op_sel_hi:[1,0]",
                  [src + i, src + i + 1, inv[R]], [src + i, src + i + 1])
            for i in range(8):
                a(f"v_cvt_pk_bf16_f32 v{TC+i}, v{src+2*i}, v{src+2*i+1}", [src + 2 * i, src + 2 * i + 1], [TC + i])
            for u in range(2):
                ar = wa + (T % 2) * 2 + u
                r.append(I(f"ds_write_b128 v{ar}, v[{TC+4*u}:{TC+4*u+3}]", 'dsw',
                           [ar] + V(TC + 4 * u, 4), ['LPW']))
            r.append(mfma(o, TZ, TZ, False))
            if T % 2:
                for aa in range(4):
                    t = RBUF[rb % 3]
                    rb += 1
                    r.append(I(f"ds_read_b128 v[{t}:{t+3}], v{ra} offset:{aa*1024}", 'dsr', [ra, 'LPW'], V(t, 4)))
                    r.append(I(f"buffer_store_dwordx4 v[{t}:{t+3}], v{ga}, s[{sO}:{sO+3}], s{sOt+aa} offen offset:{(T//2)*128}{nt}",
                               'vst', [ga] + V(t, 4) + S(sOt + aa), ['DMAORD']))
    r.append(barrier([], ['LQA'], ['QB']))
    r += q_read(1, TA, base_sgpr=sLPW)
    r += qk1
    for R, sb in ((0, XS[1]), (1, XS[0])):
        tm, tmp = vT0, vT2
        r += maxchain(sb, tm, tmp)
        a(f"v_mul_f32 v{vMC[R]}, s{sC}, v{tm}", [tm] + S(sC), [vMC[R]])
        a(f"v_add_f32 v{vTH[R]}, s{sTHR}, v{tm}", [tm] + S(sTHR), [vTH[R]])
        a(f"v_mov_b32 v{vLS[R]}, 0", [], [vLS[R]])
    r += softmax(0, XS[1], XP[0], check=False)
    r.append(salu(f"s_add_u32 s{sT[5]}, s{sKn[2]}, 49152", S(sKn[2]), S(sT[5]) + [SCC]))
    r.append(barrier(['LK0', 'LQA'], [], []))
    r += dma_group(sK, sT[5], LK, 'LK0', 'K0')
    b = lambda txt, rd, wr: r.append(salu(txt, rd, wr))
    for i in range(2):
        b(f"s_mov_b32 s{sOo[i]}, s{sQn[i]}", S(sQn[i]), S(sOo[i]))
    for i in range(3):
        b(f"s_add_u32 s{sKa[i]}, s{sKn[2]}, {(4+i)*16384}", S(sKn[2]), S(sKa[i]) + [SCC])
        b(f"s_add_u32 s{sVa[i]}, s{sKn[2]}, {(2+i)*16384}", S(sKn[2]), S(sVa[i]) + [SCC])
    b(f"s_add_u32 s{sBLK}, s{sBLK}, 1", S(sBLK), S(sBLK) + [SCC])
    b(f"s_mov_b32 s{sIT}, 0", [], S(sIT))
    b(f"s_mov_b32 s{sFLAG}, 0", [], S(sFLAG))
    r += blockcalc(sBLK)
    r += pre_a0()
    return r


sLPW = 45
sLOW = 59


def loop_end():
    r = []
    b = lambda txt, rd, wr: r.append(salu(txt, rd, wr))
    for i in range(3):
        b(f"s_add_u32 s{sKa[i]}, s{sKa[i]}, 49152", S(sKa[i]), S(sKa[i]) + [SCC])
        b(f"s_add_u32 s{sVa[i]}, s{sVa[i]}, 49152", S(sVa[i]), S(sVa[i]) + [SCC])
    b(f"s_add_u32 s{sQT}, s{sQT}, 32768", S(sQT), S(sQT) + [SCC])
    b(f"s_add_u32 s{sQL}, s{sQL}, 16384", S(sQL), S(sQL) + [SCC])
    b(f"s_add_u32 s{sIT}, s{sIT}, 1", S(sIT), S(sIT) + [SCC])
    return r


def prologue():
    L = []
    e = L.append
    e("  s_cmp_ge_u32 s2, 256")
    e("  s_cbranch_scc1 END")
    e(f"  s_load_dwordx2 s[{sQ}:{sQ+1}], s[0:1], 0")
    e(f"  s_load_dwordx2 s[{sK}:{sK+1}], s[0:1], 8")
    e(f"  s_load_dwordx2 s[{sV}:{sV+1}], s[0:1], 16")
    e(f"  s_load_dwordx2 s[{sO}:{sO+1}], s[0:1], 24")
    e(f"  s_and_b32 s{sX}, s2, 7")
    e(f"  s_lshr_b32 s{sSS}, s2, 3")
    e("  v_lshrrev_b32 v1, 6, v0")
    e("  v_and_b32 v0, 63, v0")
    e("  s_nop 0")
    e(f"  v_readfirstlane_b32 s{sW}, v1")
    e(f"  s_mov_b32 s{sQ+2}, {QBYTES}")
    e(f"  s_mov_b32 s{sQ+3}, 0x20000")
    e(f"  s_mov_b32 s{sK+2}, {KBYTES}")
    e(f"  s_mov_b32 s{sK+3}, 0x20000")
    e(f"  s_mov_b32 s{sV+2}, {KBYTES}")
    e(f"  s_mov_b32 s{sV+3}, 0x20000")
    e(f"  s_mov_b32 s{sO+2}, {QBYTES}")
    e(f"  s_mov_b32 s{sO+3}, 0x20000")
    e(f"  s_mov_b32 s{sC}, 0x{CF:08x}")
    e(f"  s_mov_b32 s{sTHR}, 0x{THR:08x}")
    e(f"  s_mov_b32 s{sOOB}, 0x{OOB:08x}")
    e(f"  s_lshl_b32 s{sW4K}, s{sW}, 12")
    e(f"  s_lshl_b32 s{sLPW}, s{sW}, 14")
    e(f"  s_add_u32 s{sLPW}, s{sLPW}, {LP}")
    e(f"  s_add_u32 s{sLOW}, s{sW4K}, {LV + 32768}")
    e(f"  s_mov_b32 s{sBLK}, 0")
    e(f"  s_mov_b32 s{sFLAG}, 0")
    e(f"  s_mov_b32 s{sOo[0]}, s{sOOB}")
    e(f"  s_mov_b32 s{sOo[1]}, s{sOOB}")
    for x in blockcalc(sBLK):
        e("  " + x.text)
    e("  v_and_b32 v32, 31, v0")
    e("  v_lshrrev_b32 v33, 5, v0")
    e("  v_lshlrev_b32 v34, 6, v33")
    e(f"  v_lshl_or_b32 v{vQD}, v32, 9, v34")
    for i in range(4):
        e(f"  v_add_u32 v34, {2*(i%2)}, v33")
        e("  v_lshlrev_b32 v34, 2, v34")
        e(f"  s_lshl_b32 s{sT[0]}, s{sW}, 1")
        e(f"  s_add_u32 s{sT[0]}, s{sT[0]}, {i//2}")
        e(f"  s_and_b32 s{sT[0]}, s{sT[0]}, 3")
        e(f"  v_or_b32 v34, s{sT[0]}, v34")
        e("  v_xor_b32 v34, v34, v32")
        e("  v_lshlrev_b32 v34, 4, v34")
        e(f"  v_lshl_or_b32 v{vDMA+i}, v33, 9, v34")
    e("  v_and_b32 v34, 3, v32")
    e("  v_lshlrev_b32 v34, 2, v34")
    e("  v_bfe_u32 v35, v32, 2, 2")
    e("  v_or_b32 v34, v34, v35")
    e("  v_lshlrev_b32 v35, 2, v33")
    e("  v_xor_b32 v34, v34, v35")
    e("  v_lshlrev_b32 v34, 4, v34")
    e("  v_lshl_or_b32 v34, v32, 9, v34")
    for t in range(8):
        c = ((t // 4) * 8 + t % 4) * 16
        e(f"  v_xor_b32 v{vKA+t}, {c}, v34")
    e("  v_bfe_u32 v34, v0, 4, 1")
    e("  v_bfe_u32 v35, v0, 2, 2")
    e("  v_and_b32 v36, 3, v0")
    e("  v_and_b32 v37, 1, v36")
    e("  v_lshl_or_b32 v37, v37, 1, v34")
    e("  v_lshlrev_b32 v38, 2, v35")
    e("  v_or_b32 v38, v38, v33")
    e("  v_xor_b32 v37, v37, v38")
    e("  v_lshlrev_b32 v37, 4, v37")
    e("  v_lshrrev_b32 v36, 1, v36")
    e("  v_lshl_or_b32 v37, v36, 3, v37")
    e("  v_lshl_or_b32 v38, v33, 2, v35")
    e("  v_lshl_or_b32 v37, v38, 9, v37")
    e(f"  v_add_u32 v37, {LV}, v37")
    for Tm in range(4):
        for s in range(2):
            x = (4 * Tm * 16) ^ (2 * s * 16)
            e(f"  v_xor_b32 v{vVA+Tm*2+s}, {x}, v37")
            if s:
                e(f"  v_add_u32 v{vVA+Tm*2+s}, 4096, v{vVA+Tm*2+s}")
    e("  s_waitcnt lgkmcnt(0)")
    return L


def stamp(k, nb):
    if OPT['stamp'] < 0:
        return []
    L = ["s_memtime s[90:91]", "s_waitcnt lgkmcnt(0)"]
    if nb == 1:
        L.append(f"s_mov_b32 s{60+k}, s90")
    else:
        for b in range(nb):
            L.append(f"s_cmp_eq_u32 s{sBLK}, {b+1}")
            L.append(f"s_cselect_b32 s{60+k+b}, s90, s{60+k+b}")
    return [I(x, 'raw') for x in L]


def stamp_dump():
    if OPT['stamp'] < 0:
        return []
    L = [f"  s_cmp_lg_u32 s2, {OPT['stamp']}", "  s_cbranch_scc1 END", f"  s_cmp_lg_u32 s{sW}, 0", "  s_cbranch_scc1 END",
         "  s_load_dwordx2 s[80:81], s[0:1], 32", "  s_mov_b32 s82, 256", "  s_mov_b32 s83, 0x20000",
         "  v_mov_b32 v33, 0", "  s_waitcnt lgkmcnt(0)"]
    for k in range(16):
        L += [f"  s_sub_u32 s90, s{60+k}, s60", "  v_mov_b32 v32, s90", f"  buffer_store_dword v32, v33, s[80:83], 0 offen offset:{4*k}"]
    L.append("  s_waitcnt vmcnt(0)")
    return L


def main():
    pro = prologue()
    pro = pro[:2] + ["  " + x.text for x in stamp(0, 1)] + pro[2:]
    P = []
    P += dma_group(sK, sKn[2], LK, 'LK0', 'K0')
    qa_slots = [LK + 16384, LK + 32768, LV, LV + 16384]
    for u in range(4):
        P.append(salu(f"s_add_u32 s{sT[u]}, s{sQB}, {u*32768}", S(sQB), S(sT[u]) + [SCC]))
        P += dma_group(sQ, sT[u], qa_slots[u], 'LQX', 'QA')
    for u in range(4):
        P.append(salu(f"s_add_u32 s{sT[u]}, s{sQB}, {u*32768+16384}", S(sQB), S(sT[u]) + [SCC]))
        P += dma_group(sQ, sT[u], LP + u * 16384, 'LQA', 'QB')
    P.append(salu(f"s_add_u32 s{sT[4]}, s{sW}, 1", S(sW), S(sT[4]) + [SCC]))
    P.append(salu(f"s_lshl_b32 s{sT[4]}, s{sT[4]}, 14", S(sT[4]), S(sT[4]) + [SCC]))
    P.append(barrier([], [], ['QA']))
    P += q_read(0, XS[2], base_sgpr=sT[4])
    bb = barrier([], [], [])
    bb.reads |= set(range(QR[0], QR[0] + 64))
    P.append(bb)
    P += dma_group(sK, sKn[0], LK + 16384, 'LK1', 'K1')
    P += dma_group(sV, sKn[0], LV + 16384, 'LV1', 'V1')
    P += dma_group(sK, sKn[1], LK + 32768, 'LK2', 'K2')
    frame[0] = 0
    M = schedule(regionM(), budget=24, maxn=6, verbose=True, name='M')
    M += stamp(1, 4)
    M.append(salu(f"s_cmp_eq_u32 s{sBLK}, 4", S(sBLK), [SCC]))
    M.append(I("s_cbranch_scc1 FIN", 'raw', [SCC]))
    body = []
    frame[0] = 0
    seq = []
    for rho in range(3):
        seq += phaseA(rho, rho * 64)
        seq += phaseB(rho, rho * 64 + 32)
    assert frame[0] % NFR == 0
    seq += pre_a0()
    seq += loop_end()
    body = schedule(seq, budget=OPT['budget'], maxn=OPT['maxn'], verbose=True, name='L')
    body.append(salu(f"s_cmp_lt_u32 s{sIT}, 4", S(sIT), [SCC]))
    body.append(I("s_cbranch_scc1 LOOP", 'raw', [SCC]))
    frame[0] = 0
    seq = []
    for rho in range(3):
        seq += phaseA(rho, rho * 64, last=True)
        seq += phaseB(rho, rho * 64 + 32, last=True)
    seq += tail()
    T = schedule(seq, budget=OPT['budget'], maxn=OPT['maxn'], verbose=True, name='E')
    T = stamp(5, 3) + T + stamp(8, 3)
    T.append(I("s_branch MREG", 'raw'))
    regions = dict(P=P, M=M, L=body, T=T)
    trace = [('P', 0), ('M', 0)]
    for b in range(3):
        trace += [('L', i) for i in range(4)] + [('T', 0), ('M', 0)]
    resolve(regions, trace)
    out = []
    hdr = open('standalone__mha_softmax__near_ridge.s.ref').read().split('\n')
    for ln in hdr:
        if ln.startswith('; @launch'):
            out.append('; @launch grid=(256,1,1) block=(256,1,1) lds=163840')
        elif ln.startswith('standalone__mha_softmax__near_ridge_kernel:'):
            out.append(ln)
            break
        else:
            out.append(ln)
    out += pro
    out += render(P)
    out.append("MREG:")
    out += render(M)
    out.append("LOOP:")
    out += render(body)
    out += render(T)
    out.append("FIN:")
    out.append("  s_waitcnt vmcnt(0)")
    out += ["  " + x.text for x in stamp(11, 1)]
    out += stamp_dump()
    out.append("END:")
    out.append("  s_endpgm")
    out += rare
    out += """.section .rodata,"a"
.p2align 6
.amdhsa_kernel standalone__mha_softmax__near_ridge_kernel
  .amdhsa_next_free_vgpr 512
  .amdhsa_next_free_sgpr 102
  .amdhsa_accum_offset 256
  .amdhsa_group_segment_fixed_size 0
  .amdhsa_kernarg_size 48
  .amdhsa_user_sgpr_count 2
  .amdhsa_user_sgpr_kernarg_segment_ptr 1
  .amdhsa_system_sgpr_workgroup_id_x 1
.end_amdhsa_kernel""".split('\n')
    open(sys.argv[1], 'w').write('\n'.join(out) + '\n')


main()
```

```python
import sys, struct
from gen_core import *

OPT = dict(rot=1, qbs=8, stamp=-1, dsp=2, pfd=4, budget=22, maxn=5, betaA=10, betaB=10, nt_o=0, nt_q=0, qpf=0, stage=0)
for a in sys.argv[2:]:
    k, v = a.split('=')
    OPT[k] = int(v)

QBYTES = 96468992
KBYTES = 67108864
OOB = 0x80000000
CF = struct.unpack('<I', struct.pack('<f', 1.4426950408889634 / 16.0))[0]
THR = struct.unpack('<I', struct.pack('<f', 8.0 * 16.0 / 1.4426950408889634))[0]

vL16, vQD = 0, 1
vDMA = 2
vKA = 6
vVA = 14
vMC = [22, 23]
vTH = [24, 25]
vLS = [26, 27]
vF, vT0, vT1, vT2 = 28, 29, 30, 31
FR = 32
NFR = 6
XP = [56, 64, 72]
XS = [80, 96, 112]
OR = [128, 256 + 128]
QR = [256, 256 + 64]
sQ, sK, sV, sO = 4, 8, 12, 16
sW, sW4K, sC, sTHR = 20, 21, 22, 23
sIT, sBLK, sFLAG = 24, 25, 26
sKa = [28, 29, 30]
sKn = [31, 32, 33]
sVa = [34, 35, 36]
sQn = [39, 40]
sOo = [41, 42]
sX, sSS = 43, 44
sT = [46, 47, 48, 49, 50, 51]
sOt = 52
sQT, sQL, sQB = 56, 57, 58
sHBn, sOFn, sHB = 92, 93, 94
LK, LV, LP = 0, 49152, 98304

rare = []
frame = [0]


def mfma(d, a, b, c):
    ctext = reg(d, 16) if c else '0'
    rd = list(range(a, a + 4)) + list(range(b, b + 4)) + (list(range(d, d + 16)) if c else [])
    return I(f"v_mfma_f32_32x32x16_bf16 {reg(d,16)}, {reg(a,4)}, {reg(b,4)}, {ctext}", 'mfma', rd, range(d, d + 16),
             srcc=(range(d, d + 16) if c else ()))


def valu(text, rd, wr, kind='valu', **kw):
    return I(text, kind, rd, wr, **kw)


def salu(text, rd=(), wr=(), **kw):
    return I(text, 'salu', rd, wr, **kw)


nfr = [NFR]


def nextfrag():
    f = FR + 4 * (frame[0] % nfr[0])
    frame[0] += 1
    return f


def kfrag(slot, t):
    f = nextfrag()
    off = (t // 8) * 256 + slot * 16384 + LK
    return f, I(f"ds_read_b128 {reg(f,4)}, v{vKA + t % 8} offset:{off}", 'dsr', [vKA + t % 8, f'LK{slot}'],
                range(f, f + 4))


def vfrag(slot, T, kk):
    f = nextfrag()
    r = []
    for s in range(2):
        off = (T // 4) * 256 + kk * 8192 + slot * 16384
        ar = vVA + (T % 4) * 2 + s
        r.append(I(f"ds_read_b64_tr_b16 {reg(f + 2 * s, 2)}, v{ar} offset:{off}", 'dsr', [ar, f'LV{slot}'],
                   range(f + 2 * s, f + 2 * s + 2)))
    return f, r


def dma_group(srd, ssoff, ldsbase, lname, tag, early=None, m0reg=None, sp=None):
    if sp is None:
        sp = OPT['dsp']
    e = lambda i: None if early is None else early + sp * i
    l = lambda i: None if early is None else early + sp * i + 1
    if m0reg is None:
        r = [salu(f"s_add_u32 m0, s{sW4K}, {ldsbase}", S(sW4K), [M0, SCC], early=early, late=l(0))]
    else:
        r = [salu(f"s_mov_b32 m0, s{m0reg}", S(m0reg), [M0], early=early, late=l(0))]
    for i in range(4):
        r.append(I(f"buffer_load_dwordx4 v{vDMA+i}, s[{srd}:{srd+3}], s{ssoff} offen offset:{i*1024} lds", 'dma',
                   [vDMA + i, M0, lname] + S(ssoff), [lname + 'w', 'DMAORD'], tag=tag, early=e(i), late=l(i)))
    return r


def barrier(free, publish, waits, early=None, late=None):
    names = list(free) + list(publish)
    return I("s_barrier", 'bar', names, names + ['BAR'], waits=waits, early=early, late=late)


def maxchain(sb, dst, tmp):
    r = []
    r.append(valu(f"v_max3_f32 v{dst}, v{sb}, v{sb+1}, v{sb+2}", V(sb, 3), [dst]))
    r.append(valu(f"v_max3_f32 v{tmp}, v{sb+3}, v{sb+4}, v{sb+5}", V(sb + 3, 3), [tmp]))
    r.append(valu(f"v_max3_f32 v{dst}, v{dst}, v{sb+6}, v{sb+7}", [dst] + V(sb + 6, 2), [dst]))
    r.append(valu(f"v_max3_f32 v{tmp}, v{tmp}, v{sb+8}, v{sb+9}", [tmp] + V(sb + 8, 2), [tmp]))
    r.append(valu(f"v_max3_f32 v{dst}, v{dst}, v{sb+10}, v{sb+11}", [dst] + V(sb + 10, 2), [dst]))
    r.append(valu(f"v_max3_f32 v{tmp}, v{tmp}, v{sb+12}, v{sb+13}", [tmp] + V(sb + 12, 2), [tmp]))
    r.append(valu(f"v_max3_f32 v{dst}, v{dst}, v{sb+14}, v{sb+15}", [dst] + V(sb + 14, 2), [dst]))
    r.append(valu(f"v_max_f32 v{dst}, v{dst}, v{tmp}", [dst, tmp], [dst]))
    r.append(valu(f"v_mov_b32 v{tmp}, v{dst}", [dst], [tmp]))
    r.append(valu(f"v_permlane32_swap_b32 v{dst}, v{tmp}", [dst, tmp], [dst, tmp]))
    r.append(valu(f"v_max_f32 v{dst}, v{dst}, v{tmp}", [dst, tmp], [dst]))
    return r


site = [0]


def rescale_O(R, freg, tmp):
    L = []
    if R == 0:
        for i in range(128):
            L.append(f"  v_mul_f32 v{128+i}, v{128+i}, v{freg}")
    else:
        for i in range(0, 128, 2):
            L.append(f"  v_accvgpr_read_b32 v{tmp}, a{128+i}")
            L.append(f"  v_accvgpr_read_b32 v{tmp+1}, a{129+i}")
            L.append(f"  v_mul_f32 v{tmp}, v{tmp}, v{freg}")
            L.append(f"  v_mul_f32 v{tmp+1}, v{tmp+1}, v{freg}")
            L.append(f"  v_accvgpr_write_b32 a{128+i}, v{tmp}")
            L.append(f"  v_accvgpr_write_b32 a{129+i}, v{tmp+1}")
    return L


def softmax(R, sb, pb, check=True):
    tm, tmp = (vT0, vT1) if R == 1 else (vT2, vT1)
    r = []
    mc, th, ls = vMC[R], vTH[R], vLS[R]
    if check:
        r += maxchain(sb, tm, tmp)
        r.append(valu(f"v_cmp_gt_f32 vcc, v{tm}, v{th}", [tm, th], [VCC]))
        k = site[0]
        site[0] += 1
        st = [mc, th, ls, tm, tmp, VCC, SCC]
        if R == 1:
            st_w = st + list(range(OR[1], OR[1] + 128)) + [pb, pb + 1]
        else:
            st_w = st + [vF] + S(sFLAG)
        r.append(I(f"s_cbranch_vccnz RARE{k}\nRET{k}:", 'br', st_w, st_w))
        L = [f"RARE{k}:", "  s_nop 7", "  s_nop 7",
             f"  v_mul_f32 v{tmp}, s{sC}, v{tm}",
             f"  v_max_f32 v{tmp}, v{tmp}, v{mc}",
             f"  v_add_f32 v{tm}, s{sTHR}, v{tm}",
             f"  v_max_f32 v{th}, v{th}, v{tm}",
             f"  v_sub_f32 v{tm}, v{mc}, v{tmp}",
             f"  v_exp_f32 v{tm}, v{tm}",
             f"  v_mov_b32 v{mc}, v{tmp}",
             "  s_nop 1",
             f"  v_mul_f32 v{ls}, v{ls}, v{tm}"]
        if R == 1:
            L += rescale_O(1, tm, pb)
        else:
            L += [f"  v_mov_b32 v{vF}, v{tm}", f"  s_mov_b32 s{sFLAG}, 1"]
        L += ["  s_nop 3", f"  s_branch RET{k}"]
        rare.extend(L)
    for i in range(16):
        r.append(valu(f"v_fma_f32 v{sb+i}, v{sb+i}, s{sC}, -v{mc}", [sb + i, mc] + S(sC), [sb + i]))
        r.append(valu(f"v_exp_f32 v{sb+i}, v{sb+i}", [sb + i], [sb + i], kind='trans'))
        r.append(valu(f"v_add_f32 v{ls}, v{ls}, v{sb+i}", [ls, sb + i], [ls]))
        if i % 2:
            r.append(valu(f"v_cvt_pk_bf16_f32 v{pb+i//2}, v{sb+i-1}, v{sb+i}", [sb + i - 1, sb + i], [pb + i // 2]))
    return r


def applyF():
    k = site[0]
    site[0] += 1
    st = list(range(OR[0], OR[0] + 128)) + [vF, SCC] + S(sFLAG)
    r = [salu(f"s_cmp_lg_u32 s{sFLAG}, 0", S(sFLAG), [SCC]),
         I(f"s_cbranch_scc1 RARE{k}\nRET{k}:", 'br', st, st)]
    L = [f"RARE{k}:", "  s_nop 7", "  s_nop 7"] + rescale_O(0, vF, None) + [f"  s_mov_b32 s{sFLAG}, 0", "  s_nop 3",
                                                                           f"  s_branch RET{k}"]
    rare.extend(L)
    return r


def qk(slot, s0, s1, skip=0, Rs=(0, 1)):
    r = []
    for t in range(16):
        f, rd = kfrag(slot, t)
        if t >= skip:
            r.append(rd)
        for R in Rs:
            r.append(mfma((s0, s1)[R], f, QR[R] + 4 * t, t > 0))
    return r


def pre_a0():
    sv = frame[0]
    frame[0] = 0
    r = [kfrag(1, t)[1] for t in range(OPT['pfd'])]
    frame[0] = sv
    return r


def pv(slot, p0, p1, Rs=(0, 1)):
    r = []
    for T in range(8):
        for kk in range(2):
            f, rd = vfrag(slot, T, kk)
            r += rd
            for R in Rs:
                r.append(mfma(OR[R] + 16 * T, f, (p0, p1)[R] + 4 * kk, True))
    return r


def phaseA(rho, g0, last=False):
    r = applyF()
    body = qk((rho + 1) % 3, XS[(rho + 2) % 3], XS[(rho + 1) % 3], skip=(OPT['pfd'] if rho == 0 else 0))
    sm = softmax(1, XS[rho], XP[(rho + 2) % 3])
    sl = (rho + 2) % 3
    so = sKn[0] if (last and rho == 2) else sVa[rho]
    xw = ['QA'] if (last and rho == 0) else []
    bar = [barrier([f'LV{sl}'], [f'LV{rho}'] + (['LQA'] if xw else []), [f'V{rho}'] + xw, early=g0 + OPT['betaA'])]
    bar += dma_group(sV, so, LV + sl * 16384, f'LV{sl}', f'V{sl}', early=g0 + OPT['betaA'])
    return r + sm + bar + body


def phaseB(rho, g0, last=False):
    body = pv(rho, XP[rho], XP[(rho + 2) % 3])
    sm = softmax(0, XS[(rho + 2) % 3], XP[(rho + 1) % 3])
    sl = (rho + 1) % 3
    g = (rho + 2) % 3
    bar = [barrier([f'LK{sl}'], [f'LK{g}'], [f'K{g}'], early=g0 + OPT['betaB'])]
    if last and rho == 2:
        bar = qa_read() + bar
        bar[-1].reads |= set(range(QR[0], QR[0] + 64)) | {'LQA'}
        bar[-1].writes |= {'LQA'}
    bar += dma_group(sK, sKn[rho] if last else sKa[rho], LK + sl * 16384, f'LK{sl}', f'K{sl}', early=g0 + OPT['betaB'])
    if rho == 1 and not last:
        bar += dma_group(sQ, sQT, None, 'LQA', 'QA', early=g0 + OPT['betaB'] + 10, m0reg=sQL)
    if rho == 0 and last and OPT['qpf']:
        for i in range(2):
            e0 = g0 + OPT['betaB'] + 10 + 64 * i
            bar.append(valu(f"v_and_b32 v{vL16}, 64, v{vQD}", [vQD], [vL16], early=e0, late=e0 + 1))
            bar.append(valu(f"v_add_u32 v{vL16}, v{vL16}, v{vQD}", [vQD, vL16], [vL16], early=e0, late=e0 + 1))
            bar.append(I(f"buffer_load_dword v{vL16}, v{vL16}, s[{sQ}:{sQ+3}], s{sQn[1]} offen offset:{i*256}", 'vld',
                         [vL16] + S(sQn[1]), ['DMAORD', vL16], early=e0, late=e0 + 1))
    if last and rho == 2:
        for u in range(4):
            bar.append(salu(f"s_add_u32 s{sT[u]}, s{sQB}, {u*32768+16384}", S(sQB), S(sT[u]) + [SCC]))
            bar += dma_group(sQ, sT[u], LP + u * 16384, 'LQA', 'QB', early=g0 + OPT['betaB'] + 8 + OPT['qbs'] * u, sp=OPT['qbs'] // 4)
    return sm + bar + body


def qload(R, early=None):
    r = []
    nt = ' nt' if OPT['nt_q'] else ''
    for t in range(16):
        d = QR[R] + 4 * t
        off = (t // 4) * 128 + (t % 4) * 16
        r.append(I(f"buffer_load_dwordx4 {reg(d,4)}, v{vQD}, s[{sQ}:{sQ+3}], s{sQn[R]} offen offset:{off}{nt}", 'vld',
                   [vQD] + S(sQn[R]), list(range(d, d + 4)) + ['DMAORD'], early=early))
    return r


def q_read(R, ta, base_sgpr=None, base_imm=None):
    r = []
    for i in range(8):
        src = f"s{base_sgpr}" if base_sgpr is not None else f"{base_imm}"
        r.append(valu(f"v_add_u32 v{ta+i}, {src}, v{vKA+i}", [vKA + i] + (S(base_sgpr) if base_sgpr is not None else []), [ta + i]))
    for t in range(16):
        d = QR[R] + 4 * t
        r.append(I(f"ds_read_b128 {reg(d,4)}, v{ta + t % 8} offset:{(t//8)*256}", 'dsr', [ta + t % 8, 'LQA'],
                   list(range(d, d + 4))))
    return r


def qa_read():
    return q_read(0, XS[2], base_sgpr=sLPW)


def tail():
    r = applyF()
    r.append(barrier([], ['LV0'], ['V0']))
    sm = softmax(1, XS[0], XP[2])
    r += sm
    r += pv(0, XP[0], XP[2], Rs=(0,))
    r += pv(0, XP[0], XP[2], Rs=(1,))
    for R, dst, tmp in ((0, vF, vT2), (1, vT1, vT0)):
        r.append(valu(f"v_mov_b32 v{tmp}, v{vLS[R]}", [vLS[R]], [tmp]))
        r.append(valu(f"v_permlane32_swap_b32 v{vLS[R]}, v{tmp}", [vLS[R], tmp], [vLS[R], tmp]))
        r.append(valu(f"v_add_f32 v{tmp}, v{tmp}, v{vLS[R]}", [vLS[R], tmp], [tmp]))
        r.append(valu(f"v_rcp_f32 v{dst}, v{tmp}", [tmp], [dst], kind='trans'))
    return r


def tileoff(dst, hb, off, k):
    return [salu(f"s_add_u32 s{dst}, s{off}, {k*16384}", S(off), S(dst) + [SCC]),
            salu(f"s_and_b32 s{dst}, s{dst}, 0x3ffff", S(dst), S(dst) + [SCC]),
            salu(f"s_or_b32 s{dst}, s{dst}, s{hb}", S(dst) + S(hb), S(dst) + [SCC])]


def blockcalc(rreg):
    t0, t1, t2, t3, t4, t5 = sT
    r = []
    a = lambda txt, rd, wr: r.append(salu(txt, rd, wr))
    a(f"s_lshl_b32 s{t0}, s{rreg}, 5", S(rreg), S(t0) + [SCC])
    a(f"s_add_u32 s{t0}, s{t0}, s{sSS}", S(t0) + S(sSS), S(t0) + [SCC])
    a(f"s_mul_i32 s{t1}, s{t0}, 171", S(t0), S(t1))
    a(f"s_lshr_b32 s{t1}, s{t1}, 9", S(t1), S(t1) + [SCC])
    a(f"s_mul_i32 s{t2}, s{t1}, 3", S(t1), S(t2))
    a(f"s_sub_u32 s{t2}, s{t0}, s{t2}", S(t0) + S(t2), S(t2) + [SCC])
    a(f"s_lshl_b32 s{t1}, s{t1}, 3", S(t1), S(t1) + [SCC])
    a(f"s_add_u32 s{t1}, s{t1}, s{sX}", S(t1) + S(sX), S(t1) + [SCC])
    a(f"s_lshl_b32 s{sHBn}, s{t1}, 18", S(t1), S(sHBn) + [SCC])
    a(f"s_and_b32 s{sOFn}, s{t1}, {15 if OPT['rot'] else 0}", S(t1), S(sOFn) + [SCC])
    a(f"s_lshl_b32 s{sOFn}, s{sOFn}, 14", S(sOFn), S(sOFn) + [SCC])
    a(f"s_add_u32 s{sOFn}, s{sOFn}, s{sW4K}", S(sOFn) + S(sW4K), S(sOFn) + [SCC])
    a(f"s_mul_i32 s{t3}, s{t1}, 376832", S(t1), S(t3))
    a(f"s_lshl_b32 s{t4}, s{t2}, 17", S(t2), S(t4) + [SCC])
    a(f"s_add_u32 s{t3}, s{t3}, s{t4}", S(t3) + S(t4), S(t3) + [SCC])
    a(f"s_add_u32 s{sQB}, s{t3}, s{sW4K}", S(t3) + S(sW4K), S(sQB) + [SCC])
    a(f"s_lshl_b32 s{t4}, s{sW}, 15", S(sW), S(t4) + [SCC])
    a(f"s_add_u32 s{sQn[0]}, s{t3}, s{t4}", S(t3) + S(t4), S(sQn[0]) + [SCC])
    a(f"s_add_u32 s{sQn[1]}, s{sQn[0]}, 16384", S(sQn[0]), S(sQn[1]) + [SCC])
    a(f"s_lshl_b32 s{t4}, s{t2}, 2", S(t2), S(t4) + [SCC])
    a(f"s_add_u32 s{t4}, s{t4}, s{sW}", S(t4) + S(sW), S(t4) + [SCC])
    a(f"s_cmp_eq_u32 s{t4}, 11", S(t4), [SCC])
    a(f"s_cselect_b32 s{sQn[1]}, s{sOOB}, s{sQn[1]}", S(sQn[1]) + S(sOOB) + [SCC], S(sQn[1]))
    a(f"s_cmp_ge_u32 s{rreg}, 3", S(rreg), [SCC])
    a(f"s_cselect_b32 s{sQn[0]}, s{sOOB}, s{sQn[0]}", S(sQn[0]) + S(sOOB) + [SCC], S(sQn[0]))
    a(f"s_cselect_b32 s{sQn[1]}, s{sOOB}, s{sQn[1]}", S(sQn[1]) + S(sOOB) + [SCC], S(sQn[1]))
    a(f"s_cselect_b32 s{sHBn}, s{sOOB}, s{sHBn}", S(sHBn) + S(sOOB) + [SCC], S(sHBn))
    a(f"s_cselect_b32 s{sQB}, s{sOOB}, s{sQB}", S(sQB) + S(sOOB) + [SCC], S(sQB))
    a(f"s_mov_b32 s{sQT}, s{sQB}", S(sQB), S(sQT))
    a(f"s_add_u32 s{sQL}, s{sW4K}, {LP}", S(sW4K), S(sQL) + [SCC])
    r += tileoff(sKn[0], sHBn, sOFn, 1) + tileoff(sKn[1], sHBn, sOFn, 2) + tileoff(sKn[2], sHBn, sOFn, 0)
    return r


sOOB = 27


def regionM():
    r = []
    inv = [vF, vT1]
    TA = XS[2]
    TC = XP[1]
    WA = XP[2]
    r.append(barrier(['LV0'], [], []))
    r += dma_group(sV, sKn[2], LV, 'LV0', 'V0')
    wa, ra, ga, tt = WA, WA + 4, WA + 5, WA + 6
    a = lambda txt, rd, wr: r.append(valu(txt, rd, wr))
    a(f"v_bfe_u32 v{ga}, v{vQD}, 6, 1", [vQD], [ga])
    a(f"v_lshrrev_b32 v{ra}, 9, v{vQD}", [vQD], [ra])
    a(f"v_lshl_or_b32 v{tt}, v{ga}, 5, v{ra}", [ga, ra], [tt])
    a(f"v_lshlrev_b32 v{ga}, 1, v{ga}", [ga], [ga])
    a(f"v_and_b32 v{wa}, 7, v{ra}", [ra], [wa])
    a(f"v_xor_b32 v{wa}, v{wa}, v{ga}", [wa, ga], [wa])
    a(f"v_lshlrev_b32 v{wa}, 4, v{wa}", [wa], [wa])
    a(f"v_lshl_or_b32 v{wa}, v{ra}, 7, v{wa}", [wa, ra], [wa])
    a(f"v_add_u32 v{wa}, s{sLOW}, v{wa}", [wa] + S(sLOW), [wa])
    a(f"v_xor_b32 v{wa+1}, 16, v{wa}", [wa], [wa + 1])
    a(f"v_xor_b32 v{wa+2}, 64, v{wa}", [wa], [wa + 2])
    a(f"v_xor_b32 v{wa+3}, 0x50, v{wa}", [wa], [wa + 3])
    a(f"v_lshrrev_b32 v{ra}, 3, v{tt}", [tt], [ra])
    a(f"v_and_b32 v{ga}, 7, v{tt}", [tt], [ga])
    a(f"v_xor_b32 v{ga}, v{ra}, v{ga}", [ra, ga], [ga])
    a(f"v_lshlrev_b32 v{ga}, 4, v{ga}", [ga], [ga])
    a(f"v_lshl_or_b32 v{ga}, v{ra}, 9, v{ga}", [ga, ra], [ga])
    a(f"v_lshlrev_b32 v{tt}, 4, v{tt}", [tt], [tt])
    a(f"v_add_u32 v{ra}, s{sLOW}, v{tt}", [tt] + S(sLOW), [ra])
    TZ = XP[0]
    for i in range(4):
        a(f"v_mov_b32 v{TZ+i}, 0", [], [TZ + i])
    RBUF = [FR + 16, FR + 20, XP[0] + 4]
    nt = ' nt' if OPT['nt_o'] else ''
    rb = 0
    nfr[0] = 4
    frame[0] = 0
    qk0 = qk(0, XS[1], XS[0], Rs=(0,))
    qk1 = qk(0, XS[1], XS[0], Rs=(1,))
    nfr[0] = NFR
    for R in range(2):
        for aa in range(4):
            r.append(salu(f"s_add_u32 s{sOt+aa}, s{sOo[R]}, {aa*4096}", S(sOo[R]), S(sOt + aa) + [SCC]))
        if R == 1:
            r.append(barrier([], ['LK0', 'LK1'], ['K0', 'K1']))
        for T in range(8):
            o = OR[R] + 16 * T
            if R == 1:
                r += qk0[4 * T:4 * T + 4]
                for i in range(16):
                    a(f"v_accvgpr_read_b32 v{TA+i}, {reg(o+i)}", [o + i], [TA + i])
                src = TA
            else:
                src = o
            for i in range(0, 16, 2):
                a(f"v_pk_mul_f32 v[{src+i}:{src+i+1}], v[{src+i}:{src+i+1}], v[{inv[R]}:{inv[R]+1}] op_sel_hi:[1,0]",
                  [src + i, src + i + 1, inv[R]], [src + i, src + i + 1])
            for i in range(8):
                a(f"v_cvt_pk_bf16_f32 v{TC+i}, v{src+2*i}, v{src+2*i+1}", [src + 2 * i, src + 2 * i + 1], [TC + i])
            for u in range(2):
                ar = wa + (T % 2) * 2 + u
                r.append(I(f"ds_write_b128 v{ar}, v[{TC+4*u}:{TC+4*u+3}]", 'dsw',
                           [ar] + V(TC + 4 * u, 4), ['LPW']))
            r.append(mfma(o, TZ, TZ, False))
            if T % 2:
                for aa in range(4):
                    t = RBUF[rb % 3]
                    rb += 1
                    r.append(I(f"ds_read_b128 v[{t}:{t+3}], v{ra} offset:{aa*1024}", 'dsr', [ra, 'LPW'], V(t, 4)))
                    r.append(I(f"buffer_store_dwordx4 v[{t}:{t+3}], v{ga}, s[{sO}:{sO+3}], s{sOt+aa} offen offset:{(T//2)*128}{nt}",
                               'vst', [ga] + V(t, 4) + S(sOt + aa), ['DMAORD']))
    r.append(barrier([], ['LQA'], ['QB']))
    r += q_read(1, TA, base_sgpr=sLPW)
    r += qk1
    for R, sb in ((0, XS[1]), (1, XS[0])):
        tm, tmp = vT0, vT2
        r += maxchain(sb, tm, tmp)
        a(f"v_mul_f32 v{vMC[R]}, s{sC}, v{tm}", [tm] + S(sC), [vMC[R]])
        a(f"v_add_f32 v{vTH[R]}, s{sTHR}, v{tm}", [tm] + S(sTHR), [vTH[R]])
        a(f"v_mov_b32 v{vLS[R]}, 0", [], [vLS[R]])
    r += softmax(0, XS[1], XP[0], check=False)
    r += tileoff(sT[5], sHBn, sOFn, 3)
    r.append(barrier(['LK0', 'LQA'], [], []))
    r += dma_group(sK, sT[5], LK, 'LK0', 'K0')
    b = lambda txt, rd, wr: r.append(salu(txt, rd, wr))
    for i in range(2):
        b(f"s_mov_b32 s{sOo[i]}, s{sQn[i]}", S(sQn[i]), S(sOo[i]))
    for i in range(3):
        r += tileoff(sKa[i], sHBn, sOFn, 4 + i) + tileoff(sVa[i], sHBn, sOFn, 2 + i)
    b(f"s_mov_b32 s{sHB}, s{sHBn}", S(sHBn), S(sHB))
    b(f"s_add_u32 s{sBLK}, s{sBLK}, 1", S(sBLK), S(sBLK) + [SCC])
    b(f"s_mov_b32 s{sIT}, 0", [], S(sIT))
    b(f"s_mov_b32 s{sFLAG}, 0", [], S(sFLAG))
    r += blockcalc(sBLK)
    r += pre_a0()
    return r


sLPW = 45
sLOW = 59


def loop_end():
    r = []
    b = lambda txt, rd, wr: r.append(salu(txt, rd, wr))
    for i in range(3):
        r += tileoff(sKa[i], sHB, sKa[i], 3) + tileoff(sVa[i], sHB, sVa[i], 3)
    b(f"s_add_u32 s{sQT}, s{sQT}, 32768", S(sQT), S(sQT) + [SCC])
    b(f"s_add_u32 s{sQL}, s{sQL}, 16384", S(sQL), S(sQL) + [SCC])
    b(f"s_add_u32 s{sIT}, s{sIT}, 1", S(sIT), S(sIT) + [SCC])
    return r


def prologue():
    L = []
    e = L.append
    e("  s_cmp_ge_u32 s2, 256")
    e("  s_cbranch_scc1 END")
    e(f"  s_load_dwordx2 s[{sQ}:{sQ+1}], s[0:1], 0")
    e(f"  s_load_dwordx2 s[{sK}:{sK+1}], s[0:1], 8")
    e(f"  s_load_dwordx2 s[{sV}:{sV+1}], s[0:1], 16")
    e(f"  s_load_dwordx2 s[{sO}:{sO+1}], s[0:1], 24")
    e(f"  s_and_b32 s{sX}, s2, 7")
    e(f"  s_lshr_b32 s{sSS}, s2, 3")
    e("  v_lshrrev_b32 v1, 6, v0")
    e("  v_and_b32 v0, 63, v0")
    e("  s_nop 0")
    e(f"  v_readfirstlane_b32 s{sW}, v1")
    e(f"  s_mov_b32 s{sQ+2}, {QBYTES}")
    e(f"  s_mov_b32 s{sQ+3}, 0x20000")
    e(f"  s_mov_b32 s{sK+2}, {KBYTES}")
    e(f"  s_mov_b32 s{sK+3}, 0x20000")
    e(f"  s_mov_b32 s{sV+2}, {KBYTES}")
    e(f"  s_mov_b32 s{sV+3}, 0x20000")
    e(f"  s_mov_b32 s{sO+2}, {QBYTES}")
    e(f"  s_mov_b32 s{sO+3}, 0x20000")
    e(f"  s_mov_b32 s{sC}, 0x{CF:08x}")
    e(f"  s_mov_b32 s{sTHR}, 0x{THR:08x}")
    e(f"  s_mov_b32 s{sOOB}, 0x{OOB:08x}")
    e(f"  s_lshl_b32 s{sW4K}, s{sW}, 12")
    e(f"  s_lshl_b32 s{sLPW}, s{sW}, 14")
    e(f"  s_add_u32 s{sLPW}, s{sLPW}, {LP}")
    e(f"  s_add_u32 s{sLOW}, s{sW4K}, {LV + 32768}")
    e(f"  s_mov_b32 s{sBLK}, 0")
    e(f"  s_mov_b32 s{sFLAG}, 0")
    e(f"  s_mov_b32 s{sOo[0]}, s{sOOB}")
    e(f"  s_mov_b32 s{sOo[1]}, s{sOOB}")
    for x in blockcalc(sBLK):
        e("  " + x.text)
    e("  v_and_b32 v32, 31, v0")
    e("  v_lshrrev_b32 v33, 5, v0")
    e("  v_lshlrev_b32 v34, 6, v33")
    e(f"  v_lshl_or_b32 v{vQD}, v32, 9, v34")
    for i in range(4):
        e(f"  v_add_u32 v34, {2*(i%2)}, v33")
        e("  v_lshlrev_b32 v34, 2, v34")
        e(f"  s_lshl_b32 s{sT[0]}, s{sW}, 1")
        e(f"  s_add_u32 s{sT[0]}, s{sT[0]}, {i//2}")
        e(f"  s_and_b32 s{sT[0]}, s{sT[0]}, 3")
        e(f"  v_or_b32 v34, s{sT[0]}, v34")
        e("  v_xor_b32 v34, v34, v32")
        e("  v_lshlrev_b32 v34, 4, v34")
        e(f"  v_lshl_or_b32 v{vDMA+i}, v33, 9, v34")
    e("  v_and_b32 v34, 3, v32")
    e("  v_lshlrev_b32 v34, 2, v34")
    e("  v_bfe_u32 v35, v32, 2, 2")
    e("  v_or_b32 v34, v34, v35")
    e("  v_lshlrev_b32 v35, 2, v33")
    e("  v_xor_b32 v34, v34, v35")
    e("  v_lshlrev_b32 v34, 4, v34")
    e("  v_lshl_or_b32 v34, v32, 9, v34")
    for t in range(8):
        c = ((t // 4) * 8 + t % 4) * 16
        e(f"  v_xor_b32 v{vKA+t}, {c}, v34")
    e("  v_bfe_u32 v34, v0, 4, 1")
    e("  v_bfe_u32 v35, v0, 2, 2")
    e("  v_and_b32 v36, 3, v0")
    e("  v_and_b32 v37, 1, v36")
    e("  v_lshl_or_b32 v37, v37, 1, v34")
    e("  v_lshlrev_b32 v38, 2, v35")
    e("  v_or_b32 v38, v38, v33")
    e("  v_xor_b32 v37, v37, v38")
    e("  v_lshlrev_b32 v37, 4, v37")
    e("  v_lshrrev_b32 v36, 1, v36")
    e("  v_lshl_or_b32 v37, v36, 3, v37")
    e("  v_lshl_or_b32 v38, v33, 2, v35")
    e("  v_lshl_or_b32 v37, v38, 9, v37")
    e(f"  v_add_u32 v37, {LV}, v37")
    for Tm in range(4):
        for s in range(2):
            x = (4 * Tm * 16) ^ (2 * s * 16)
            e(f"  v_xor_b32 v{vVA+Tm*2+s}, {x}, v37")
            if s:
                e(f"  v_add_u32 v{vVA+Tm*2+s}, 4096, v{vVA+Tm*2+s}")
    e("  s_waitcnt lgkmcnt(0)")
    return L


def stamp(k, nb):
    if OPT['stamp'] < 0:
        return []
    L = ["s_memtime s[90:91]", "s_waitcnt lgkmcnt(0)"]
    if nb == 1:
        L.append(f"s_mov_b32 s{60+k}, s90")
    else:
        for b in range(nb):
            L.append(f"s_cmp_eq_u32 s{sBLK}, {b+1}")
            L.append(f"s_cselect_b32 s{60+k+b}, s90, s{60+k+b}")
    return [I(x, 'raw') for x in L]


def stamp_dump():
    if OPT['stamp'] < 0:
        return []
    L = [f"  s_cmp_lg_u32 s2, {OPT['stamp']}", "  s_cbranch_scc1 END", f"  s_cmp_lg_u32 s{sW}, 0", "  s_cbranch_scc1 END",
         "  s_load_dwordx2 s[80:81], s[0:1], 32", "  s_mov_b32 s82, 256", "  s_mov_b32 s83, 0x20000",
         "  v_mov_b32 v33, 0", "  s_waitcnt lgkmcnt(0)"]
    for k in range(16):
        L += [f"  s_sub_u32 s90, s{60+k}, s60", "  v_mov_b32 v32, s90", f"  buffer_store_dword v32, v33, s[80:83], 0 offen offset:{4*k}"]
    L.append("  s_waitcnt vmcnt(0)")
    return L


def main():
    pro = prologue()
    pro = pro[:2] + ["  " + x.text for x in stamp(0, 1)] + pro[2:]
    P = []
    P += dma_group(sK, sKn[2], LK, 'LK0', 'K0')
    qa_slots = [LK + 16384, LK + 32768, LV, LV + 16384]
    for u in range(4):
        P.append(salu(f"s_add_u32 s{sT[u]}, s{sQB}, {u*32768}", S(sQB), S(sT[u]) + [SCC]))
        P += dma_group(sQ, sT[u], qa_slots[u], 'LQX', 'QA')
    for u in range(4):
        P.append(salu(f"s_add_u32 s{sT[u]}, s{sQB}, {u*32768+16384}", S(sQB), S(sT[u]) + [SCC]))
        P += dma_group(sQ, sT[u], LP + u * 16384, 'LQA', 'QB')
    P.append(salu(f"s_add_u32 s{sT[4]}, s{sW}, 1", S(sW), S(sT[4]) + [SCC]))
    P.append(salu(f"s_lshl_b32 s{sT[4]}, s{sT[4]}, 14", S(sT[4]), S(sT[4]) + [SCC]))
    P.append(barrier([], [], ['QA']))
    P += stamp(12, 1)
    P += q_read(0, XS[2], base_sgpr=sT[4])
    bb = barrier([], [], [])
    bb.reads |= set(range(QR[0], QR[0] + 64))
    P.append(bb)
    P += dma_group(sK, sKn[0], LK + 16384, 'LK1', 'K1')
    P += dma_group(sV, sKn[0], LV + 16384, 'LV1', 'V1')
    P += dma_group(sK, sKn[1], LK + 32768, 'LK2', 'K2')
    frame[0] = 0
    M = schedule(regionM(), budget=24, maxn=6, verbose=True, name='M')
    M += stamp(1, 4)
    M.append(salu(f"s_cmp_eq_u32 s{sBLK}, 4", S(sBLK), [SCC]))
    M.append(I("s_cbranch_scc1 FIN", 'raw', [SCC]))
    body = []
    frame[0] = 0
    seq = []
    for rho in range(3):
        seq += phaseA(rho, rho * 64)
        seq += phaseB(rho, rho * 64 + 32)
    assert frame[0] % NFR == 0
    seq += pre_a0()
    seq += loop_end()
    body = schedule(seq, budget=OPT['budget'], maxn=OPT['maxn'], verbose=True, name='L')
    body.append(salu(f"s_cmp_lt_u32 s{sIT}, 4", S(sIT), [SCC]))
    body.append(I("s_cbranch_scc1 LOOP", 'raw', [SCC]))
    frame[0] = 0
    seq = []
    for rho in range(3):
        seq += phaseA(rho, rho * 64, last=True)
        seq += phaseB(rho, rho * 64 + 32, last=True)
    seq += tail()
    T = schedule(seq, budget=OPT['budget'], maxn=OPT['maxn'], verbose=True, name='E')
    T = stamp(5, 3) + T + stamp(8, 3)
    T.append(I("s_branch MREG", 'raw'))
    regions = dict(P=P, M=M, L=body, T=T)
    trace = [('P', 0), ('M', 0)]
    for b in range(3):
        trace += [('L', i) for i in range(4)] + [('T', 0), ('M', 0)]
    resolve(regions, trace)
    out = []
    hdr = open('standalone__mha_softmax__near_ridge.s.ref').read().split('\n')
    for ln in hdr:
        if ln.startswith('; @launch'):
            out.append('; @launch grid=(256,1,1) block=(256,1,1) lds=163840')
        elif ln.startswith('standalone__mha_softmax__near_ridge_kernel:'):
            out.append(ln)
            break
        else:
            out.append(ln)
    out += pro
    out += render(P)
    out.append("MREG:")
    out += render(M)
    out.append("LOOP:")
    out += render(body)
    out += render(T)
    out.append("FIN:")
    out.append("  s_waitcnt vmcnt(0)")
    out += ["  " + x.text for x in stamp(11, 1)]
    out += stamp_dump()
    out.append("END:")
    out.append("  s_endpgm")
    out += rare
    out += """.section .rodata,"a"
.p2align 6
.amdhsa_kernel standalone__mha_softmax__near_ridge_kernel
  .amdhsa_next_free_vgpr 512
  .amdhsa_next_free_sgpr 102
  .amdhsa_accum_offset 256
  .amdhsa_group_segment_fixed_size 0
  .amdhsa_kernarg_size 48
  .amdhsa_user_sgpr_count 2
  .amdhsa_user_sgpr_kernarg_segment_ptr 1
  .amdhsa_system_sgpr_workgroup_id_x 1
.end_amdhsa_kernel""".split('\n')
    open(sys.argv[1], 'w').write('\n'.join(out) + '\n')


main()
```
